```python
import torch

def _softmax(x, axis=-1):
    return torch.softmax(x, dim=axis)
def _gelu(x):
    return torch.nn.functional.gelu(x, approximate="tanh")
def _silu(x):
    return torch.nn.functional.silu(x)
def _sigmoid(x):
    return torch.sigmoid(x)
def _layernorm(x, axis=-1, eps=1e-5):
    m = x.mean(dim=axis, keepdim=True)
    v = x.var(dim=axis, keepdim=True, unbiased=False)
    return (x - m) / torch.sqrt(v + eps)
def _scatter_add(tgt, idx, src, axis=0):
    return tgt.clone().index_add_(axis, idx, src)
def _segment_sum(src, seg, n):
    out = torch.zeros((n,) + src.shape[1:], dtype=src.dtype)
    return out.index_add_(0, seg, src)
def _pad(x, pw):
    flat = tuple(v for pair in reversed(pw) for v in pair)
    return torch.nn.functional.pad(x, flat)

kernel_name = 'interleave_layers__grouped_kv_mqa__sliding_local_dilated__prompt'

def setup_inputs():

    _w = (lambda a: (lambda t: t.to(torch.bfloat16) if t.is_floating_point() else t)(torch.as_tensor(a)))
    def _A_setup():
        B, S, D, H = 1, 2048, 576, 32
        Dh = D // H
        return {
            "x": _w((lambda *s: torch.randn(*s, dtype=torch.bfloat16) * 0.05)(B, S, D)),
            "wq": _w((lambda *s: torch.randn(*s, dtype=torch.bfloat16) * 0.05)(D, H * Dh)),
            "wk": _w((lambda *s: torch.randn(*s, dtype=torch.bfloat16) * 0.05)(D, Dh)),
            "wv": _w((lambda *s: torch.randn(*s, dtype=torch.bfloat16) * 0.05)(D, Dh)),
            "wo": _w((lambda *s: torch.randn(*s, dtype=torch.bfloat16) * 0.05)(H * Dh, D)),
        }
    _A_in = _A_setup()

    def _B_setup():
        B, S, D = 1, 2048, 576
        return {
            "x": _w((lambda *s: torch.randn(*s, dtype=torch.bfloat16) * 0.05)(B, S, D)),
            "wqkv": _w((lambda *s: torch.randn(*s, dtype=torch.bfloat16) * 0.05)(D, 3 * D)),
            "wo": _w((lambda *s: torch.randn(*s, dtype=torch.bfloat16) * 0.05)(D, D)),
        }
    _B_in = _B_setup()

    return {
        "A_x": _A_in["x"],
        "A_wq": _A_in["wq"],
        "A_wk": _A_in["wk"],
        "A_wv": _A_in["wv"],
        "A_wo": _A_in["wo"],
        "B_x": _B_in["x"],
        "B_wqkv": _B_in["wqkv"],
        "B_wo": _B_in["wo"],
    }

def reference(A_x, A_wq, A_wk, A_wv, A_wo, B_x, B_wqkv, B_wo):
    def _A_ref(x, wq, wk, wv, wo):
        B, S, D = x.shape
        H = 32
        Dh = D // H
        q = (lambda x, *d: x.permute(*d))((x @ wq).reshape(B, S, H, Dh), 0, 2, 1, 3)
        k = x @ wk
        v = x @ wv
        scores = torch.einsum("bhqd,bkd->bhqk", q, k) * (Dh ** -0.5)
        p = _softmax(scores, axis=-1)
        o = torch.einsum("bhqk,bkd->bhqd", p, v)
        return (lambda x, *d: x.permute(*d))(o, 0, 2, 1, 3).reshape(B, S, H * Dh) @ wo

    def _B_ref(x, wqkv, wo):
        B, S, D = x.shape
        H = 32; Dh = D // H
        W, dil = 8, 2
        qkv = (lambda x, *d: x.permute(*d))((x @ wqkv).reshape(B, S, 3, H, Dh), 2, 0, 3, 1, 4)
        q, k, v = qkv[0], qkv[1], qkv[2]
        scale = Dh ** -0.5
        pos = torch.arange(S)
        off = torch.arange(W) * dil
        idx = pos[:, None] - off[None, :]
        mask = idx >= 0
        idx_c = torch.where(mask, idx, 0).reshape(-1)
        kg = k[:, :, idx_c, :].reshape(B, H, S, W, Dh)
        vg = v[:, :, idx_c, :].reshape(B, H, S, W, Dh)
        logits = torch.einsum("bhsd,bhswd->bhsw", q, kg) * scale
        logits = torch.where(mask[None, None, :, :], logits, -1e9)
        attn = _softmax(logits, axis=-1)
        o = torch.einsum("bhsw,bhswd->bhsd", attn, vg)
        return (lambda x, *d: x.permute(*d))(o, 0, 2, 1, 3).reshape(B, S, D) @ wo

    x = A_x
    x = x + _A_ref(_layernorm(x, axis=-1), A_wq, A_wk, A_wv, A_wo)
    x = x + _B_ref(_layernorm(x, axis=-1), B_wqkv, B_wo)
    x = x + _A_ref(_layernorm(x, axis=-1), A_wq, A_wk, A_wv, A_wo)
    x = x + _B_ref(_layernorm(x, axis=-1), B_wqkv, B_wo)
    return x
```

```python
class Asm:
    def __init__(self):
        self.lines = []
        self.uid = 0
    def e(self, s):
        for l in s.strip('\n').split('\n'):
            self.lines.append('    ' + l.strip() if not l.strip().endswith(':') else l.strip())
    def label(self, name):
        self.lines.append(name + ':')
    def newlabel(self, base):
        self.uid += 1
        return f'.L{base}_{self.uid}'
    def comment(self, s):
        self.lines.append('    ; ' + s)
    def text(self):
        return '\n'.join(self.lines) + '\n'

def vr(a, n=1):
    return f'v{a}' if n == 1 else f'v[{a}:{a+n-1}]'
def sr(a, n=1):
    return f's{a}' if n == 1 else f's[{a}:{a+n-1}]'

def srd(A, sd, sbase, nbytes, off=0):
    if off:
        A.e(f's_add_u32 s{sd}, s{sbase}, 0x{off:x}')
        A.e(f's_addc_u32 s{sd+1}, s{sbase+1}, 0')
    else:
        A.e(f's_mov_b32 s{sd}, s{sbase}')
        A.e(f's_mov_b32 s{sd+1}, s{sbase+1}')
    A.e(f's_mov_b32 s{sd+2}, 0x{nbytes:x}')
    A.e(f's_mov_b32 s{sd+3}, 0x00020000')

def kdesc(name, vgpr, sgpr, lds=0):
    acc = (vgpr + 3) // 4 * 4
    return f""".section .rodata,"a"
.p2align 6
.amdhsa_kernel {name}
  .amdhsa_next_free_vgpr {vgpr}
  .amdhsa_next_free_sgpr {sgpr}
  .amdhsa_accum_offset {acc}
  .amdhsa_group_segment_fixed_size 0
  .amdhsa_kernarg_size 88
  .amdhsa_user_sgpr_count 2
  .amdhsa_user_sgpr_kernarg_segment_ptr 1
  .amdhsa_system_sgpr_workgroup_id_x 1
.end_amdhsa_kernel
.text
"""
def khead(name):
    return f""".globl {name}
.p2align 8
.type {name},@function
{name}:
"""
```

```python
import sys, math, struct
from asmlib import *

S = 2048; D = 576; H = 32; DH = 18
XBYTES = S * D * 2
WS_XA, WS_XB, WS_XC, WS_Q, WS_O, WS_KV = 0x0, 0x240000, 0x480000, 0x6C0000, 0x900000, 0xB40000
KA = dict(A_x=0, A_wq=8, A_wk=16, A_wv=24, A_wo=32, B_x=40, B_wqkv=48, B_wo=56, out=64, dbg=72, ws=80)
QSCALE = (DH ** -0.5) * math.log2(math.e)
def f32bits(x): return struct.unpack('<I', struct.pack('<f', x))[0]

def load_ptr(A, sdst, spec):
    if spec[0] == 'k':
        A.e(f's_load_dwordx2 s[{sdst}:{sdst+1}], s[0:1], {KA[spec[1]]}')
        return 0
    A.e(f's_load_dwordx2 s[{sdst}:{sdst+1}], s[0:1], {KA["ws"]}')
    return spec[1]

def layernorm_regs(A, va, nreg, vt, sone):
    s0, q0 = vt, vt + 4
    A.e(f's_mov_b32 s{sone}, 0x3f803f80')
    for i in range(4):
        A.e(f'v_mov_b32 v{s0+i}, 0')
        A.e(f'v_mov_b32 v{q0+i}, 0')
    for i in range(nreg):
        A.e(f'v_dot2_f32_bf16 v{s0+i%4}, v{va+i}, s{sone}, v{s0+i%4}')
        A.e(f'v_dot2_f32_bf16 v{q0+i%4}, v{va+i}, v{va+i}, v{q0+i%4}')
    A.e('s_nop 3')
    A.e(f'v_add_f32 v{s0}, v{s0}, v{s0+1}')
    A.e(f'v_add_f32 v{s0+2}, v{s0+2}, v{s0+3}')
    A.e(f'v_add_f32 v{q0}, v{q0}, v{q0+1}')
    A.e(f'v_add_f32 v{q0+2}, v{q0+2}, v{q0+3}')
    A.e(f'v_add_f32 v{s0}, v{s0}, v{s0+2}')
    A.e(f'v_add_f32 v{q0}, v{q0}, v{q0+2}')
    for op in ('v_permlane32_swap_b32', 'v_permlane16_swap_b32'):
        A.e(f'v_mov_b32 v{s0+1}, v{s0}')
        A.e(f'v_mov_b32 v{q0+1}, v{q0}')
        A.e('s_nop 1')
        A.e(f'{op} v{s0}, v{s0+1}')
        A.e(f'{op} v{q0}, v{q0+1}')
        A.e(f'v_add_f32 v{s0}, v{s0}, v{s0+1}')
        A.e(f'v_add_f32 v{q0}, v{q0}, v{q0+1}')
    inv = f32bits(1.0 / D)
    A.e(f's_mov_b32 s{sone}, 0x{inv:x}')
    A.e(f'v_mul_f32 v{s0}, s{sone}, v{s0}')
    A.e(f'v_mul_f32 v{q0}, s{sone}, v{q0}')
    A.e(f'v_fma_f32 v{q0}, -v{s0}, v{s0}, v{q0}')
    A.e(f'v_max_f32 v{q0}, 0, v{q0}')
    A.e(f'v_cvt_pk_bf16_f32 v{s0+1}, v{s0}, v{q0}')
    A.e(f'v_lshlrev_b32 v{s0}, 16, v{s0+1}')
    A.e(f'v_and_b32 v{q0}, 0xffff0000, v{s0+1}')
    A.e(f'v_add_f32 v{q0}, 0x{f32bits(1e-5):x}, v{q0}')
    A.e(f'v_cvt_pk_bf16_f32 v{q0}, v{q0}, v{q0}')
    A.e(f'v_lshlrev_b32 v{q0}, 16, v{q0}')
    A.e(f'v_sqrt_f32 v{q0}, v{q0}')
    A.e('s_nop 0')
    A.e(f'v_cvt_pk_bf16_f32 v{q0}, v{q0}, v{q0}')
    A.e(f'v_lshlrev_b32 v{q0}, 16, v{q0}')
    A.e(f'v_rcp_f32 v{q0}, v{q0}')
    A.e('s_nop 0')
    A.e(f'v_mul_f32 v{s0}, v{s0}, v{q0}')
    A.e(f's_mov_b32 s{sone}, 0xffff0000')
    t0 = vt + 8
    for i in range(nreg):
        a = va + i; t = t0 + (i % 2) * 2
        A.e(f'v_lshlrev_b32 v{t}, 16, v{a}')
        A.e(f'v_and_b32 v{t+1}, s{sone}, v{a}')
        A.e(f'v_fma_f32 v{t}, v{t}, v{q0}, -v{s0}')
        A.e(f'v_fma_f32 v{t+1}, v{t+1}, v{q0}, -v{s0}')
        A.e(f'v_cvt_pk_bf16_f32 v{a}, v{t}, v{t+1}')

def gemm96(A, name, mode, a_spec, w_name, xin_spec=None, out_spec=None):
    ncol = 6 if mode == 'out' else 8
    nwg = 32 * ncol
    END = A.newlabel('end')
    A.lines.append(khead(name).rstrip())
    A.e(f's_cmp_ge_u32 s2, {nwg}')
    A.e(f's_cbranch_scc1 {END}')
    offA = load_ptr(A, 4, a_spec)
    A.e(f's_load_dwordx2 s[6:7], s[0:1], {KA[w_name]}')
    if mode == 'out':
        offX = load_ptr(A, 8, xin_spec)
        offO = load_ptr(A, 10, out_spec)
        A.e('s_mul_i32 s3, s2, 43691')
        A.e('s_lshr_b32 s3, s3, 18')
        A.e('s_mul_i32 s28, s3, 6')
        A.e('s_sub_u32 s28, s2, s28')
    else:
        A.e(f's_load_dwordx4 s[8:11], s[0:1], {KA["A_wk"]}')
        A.e(f's_load_dwordx2 s[32:33], s[0:1], {KA["ws"]}')
        A.e('s_lshr_b32 s3, s2, 3')
        A.e('s_and_b32 s28, s2, 7')
    A.e('v_and_b32 v1, 63, v0')
    A.e('v_lshrrev_b32 v11, 6, v0')
    A.e('s_nop 0')
    A.e('v_readfirstlane_b32 s29, v11')
    A.e('v_and_b32 v12, 15, v1')
    A.e('v_lshrrev_b32 v13, 4, v1')
    A.e('s_lshl_b32 s30, s3, 6')
    A.e('s_lshl_b32 s31, s29, 4')
    A.e('s_add_u32 s30, s30, s31')
    A.e('v_add_u32 v14, s30, v12')
    A.e('v_mul_u32_u24 v14, 1152, v14')
    A.e('v_lshl_add_u32 v2, v13, 4, v14')
    A.e('s_waitcnt lgkmcnt(0)')
    srd(A, 12, 4, XBYTES, offA)
    VA, VB, VACC, VX = 16, 88, 136, 160
    for ks in range(18):
        A.e(f'buffer_load_dwordx4 v[{VA+4*ks}:{VA+4*ks+3}], v2, s[12:15], 0 offen offset:{ks*64}')
    nvm_after_A = 0
    if mode == 'out':
        srd(A, 20, 8, XBYTES, offX)
        srd(A, 24, 10, XBYTES, offO)
        A.e('s_mul_i32 s31, s28, 192')
        A.e('v_lshl_add_u32 v3, v13, 3, v14')
        A.e('v_add_u32 v3, s31, v3')
        for t in range(6):
            A.e(f'buffer_load_dwordx2 v[{VX+2*t}:{VX+2*t+1}], v3, s[20:23], 0 offen offset:{t*32}')
    KVPATH = A.newlabel('kv')
    if mode == 'qkv':
        A.e('s_cmp_ge_u32 s28, 6')
        A.e(f's_cbranch_scc1 {KVPATH}')
    srd(A, 16, 6, D * D * 2)
    for r in range(3):
        A.e(f'v_add_u32 v15, {r*256}, v0')
        A.e('v_mul_u32_u24 v11, 43691, v15')
        A.e('v_lshrrev_b32 v11, 19, v11')
        A.e('v_mul_u32_u24 v7, 12, v11')
        A.e('v_sub_u32 v15, v15, v7')
        A.e('v_lshrrev_b32 v7, 3, v11')
        A.e('v_and_b32 v7, 1, v7')
        A.e('v_lshlrev_b32 v7, 1, v7')
        A.e('v_xor_b32 v15, v15, v7')
        A.e('v_lshlrev_b32 v15, 4, v15')
        A.e(f'v_mad_u32_u24 v{4+r}, v11, v9, v15' if False else f'v_mul_u32_u24 v11, 1152, v11')
        A.e(f'v_add_u32 v{4+r}, v11, v15')
    A.e('s_mul_i32 s31, s28, 192')
    A.e('s_lshl_b32 s34, s29, 10')
    for r in range(27):
        A.e(f's_add_u32 m0, s34, {r*4096}')
        A.e(f's_add_u32 s35, s31, {(r//3)*73728}')
        A.e(f'buffer_load_dwordx4 v{4+r%3}, s[16:19], s35 offen lds')
    A.e('v_lshrrev_b32 v7, 2, v12')
    A.e('v_and_b32 v8, 3, v12')
    A.e('v_lshl_add_u32 v7, v13, 3, v7')
    A.e('v_mul_u32_u24 v7, 192, v7')
    A.e('v_lshl_add_u32 v7, v8, 3, v7')
    A.e('v_and_b32 v8, 1, v13')
    A.e('v_lshlrev_b32 v8, 5, v8')
    A.e('v_sub_u32 v9, v7, v8')
    A.e('v_add_u32 v7, v7, v8')
    A.e(f'v_add_u32 v8, {9*6144}, v7')
    A.e(f'v_add_u32 v10, {9*6144}, v9')
    for i in range(24):
        A.e(f'v_mov_b32 v{VACC+i}, 0')
    if mode == 'qkv':
        A.e('s_waitcnt vmcnt(27)')
        layernorm_regs(A, VA, 72, VX, 36)

    def breads(ks):
        buf = VB + 24 * (ks % 2)
        for t in range(6):
            base = (7 if t % 2 == 0 else 9) + (1 if ks >= 9 else 0)
            off = (ks % 9) * 6144 + t * 32
            A.e(f'ds_read_b64_tr_b16 v[{buf+4*t}:{buf+4*t+1}], v{base} offset:{off}')
            A.e(f'ds_read_b64_tr_b16 v[{buf+4*t+2}:{buf+4*t+3}], v{base} offset:{off+768}')
    A.e('s_waitcnt vmcnt(18)')
    A.e('s_barrier')
    breads(0)
    for ks in range(18):
        if ks + 1 < 18:
            if (ks + 1) % 6 == 0:
                A.e(f's_waitcnt vmcnt({18 - 9 * ((ks + 1) // 6)})')
                A.e('s_barrier')
            breads(ks + 1)
            A.e('s_waitcnt lgkmcnt(12)')
        else:
            A.e('s_waitcnt lgkmcnt(0)')
        buf = VB + 24 * (ks % 2)
        for t in range(6):
            A.e(f'v_mfma_f32_16x16x32_bf16 v[{VACC+4*t}:{VACC+4*t+3}], v[{buf+4*t}:{buf+4*t+3}], v[{VA+4*ks}:{VA+4*ks+3}], v[{VACC+4*t}:{VACC+4*t+3}]')
    A.e('s_nop 7')
    if mode == 'out':
        A.e('s_mov_b32 s36, 0xffff0000')
        for t in range(6):
            a = VACC + 4 * t; x = VX + 2 * t
            A.e(f'v_cvt_pk_bf16_f32 v{a}, v{a}, v{a+1}')
            A.e(f'v_cvt_pk_bf16_f32 v{a+1}, v{a+2}, v{a+3}')
            for h in range(2):
                A.e(f'v_lshlrev_b32 v11, 16, v{a+h}')
                A.e(f'v_and_b32 v15, s36, v{a+h}')
                A.e(f'v_lshlrev_b32 v{a+2}, 16, v{x+h}')
                A.e(f'v_and_b32 v{a+3}, s36, v{x+h}')
                A.e(f'v_add_f32 v11, v11, v{a+2}')
                A.e(f'v_add_f32 v15, v15, v{a+3}')
                A.e(f'v_cvt_pk_bf16_f32 v{x+h}, v11, v15')
            A.e(f'buffer_store_dwordx2 v[{x}:{x+1}], v3, s[24:27], 0 offen offset:{t*32}')
        A.e('s_endpgm')
    else:
        srd(A, 24, 32, XBYTES, WS_Q)
        A.e('s_mul_i32 s31, s28, 192')
        A.e('v_lshl_add_u32 v3, v13, 3, v14')
        A.e('v_add_u32 v3, s31, v3')
        A.e(f's_mov_b32 s36, 0x{f32bits(QSCALE):x}')
        for t in range(6):
            a = VACC + 4 * t
            for i in range(4):
                A.e(f'v_mul_f32 v{a+i}, s36, v{a+i}')
            A.e(f'v_cvt_pk_bf16_f32 v{a}, v{a}, v{a+1}')
            A.e(f'v_cvt_pk_bf16_f32 v{a+1}, v{a+2}, v{a+3}')
            A.e(f'buffer_store_dwordx2 v[{a}:{a+1}], v3, s[24:27], 0 offen offset:{t*32}')
        A.e('s_endpgm')
        A.label(KVPATH)
        A.e('s_cmp_eq_u32 s28, 6')
        A.e('s_cselect_b32 s16, s8, s10')
        A.e('s_cselect_b32 s17, s9, s11')
        A.e(f's_mov_b32 s18, {D*DH*2}')
        A.e('s_mov_b32 s19, 0x00020000')
        A.e('v_lshrrev_b32 v11, 4, v0')
        A.e('v_and_b32 v15, 15, v0')
        A.e('v_lshrrev_b32 v7, 3, v11')
        A.e('v_and_b32 v7, 1, v7')
        A.e('v_lshlrev_b32 v7, 3, v7')
        A.e('v_xor_b32 v15, v15, v7')
        A.e('v_cmp_gt_u32 vcc, 9, v15')
        A.e('s_nop 1')
        A.e('v_cndmask_b32 v15, 0, v15, vcc')
        A.e('v_lshlrev_b32 v15, 2, v15')
        A.e('v_mul_u32_u24 v11, 36, v11')
        A.e('v_add_u32 v4, v11, v15')
        A.e('s_lshl_b32 s34, s29, 8')
        for r in range(36):
            A.e(f's_add_u32 m0, s34, {r*1024}')
            A.e(f's_mov_b32 s35, {r*16*36}')
            A.e(f'buffer_load_dword v4, s[16:19], s35 offen lds')
        A.e('v_lshrrev_b32 v7, 2, v12')
        A.e('v_and_b32 v8, 3, v12')
        A.e('v_lshl_add_u32 v7, v13, 3, v7')
        A.e('v_lshlrev_b32 v7, 6, v7')
        A.e('v_lshl_add_u32 v7, v8, 3, v7')
        A.e('v_and_b32 v8, 1, v13')
        A.e('v_lshlrev_b32 v8, 5, v8')
        A.e('v_sub_u32 v9, v7, v8')
        A.e('v_add_u32 v7, v7, v8')
        for i in range(8):
            A.e(f'v_mov_b32 v{VACC+i}, 0')
        A.e('s_waitcnt vmcnt(36)')
        layernorm_regs(A, VA, 72, VX, 36)
        A.e('s_waitcnt vmcnt(0)')
        A.e('s_barrier')
        for ks in range(18):
            buf = VB + 8 * (ks % 6)
            for t in range(2):
                base = 7 if t == 0 else 9
                off = ks * 2048 + t * 32
                A.e(f'ds_read_b64_tr_b16 v[{buf+4*t}:{buf+4*t+1}], v{base} offset:{off}')
                A.e(f'ds_read_b64_tr_b16 v[{buf+4*t+2}:{buf+4*t+3}], v{base} offset:{off+256}')
            if ks % 3 == 2:
                A.e('s_waitcnt lgkmcnt(0)')
                for k2 in range(ks - 2, ks + 1):
                    b2 = VB + 8 * (k2 % 6)
                    for t in range(2):
                        A.e(f'v_mfma_f32_16x16x32_bf16 v[{VACC+4*t}:{VACC+4*t+3}], v[{b2+4*t}:{b2+4*t+3}], v[{VA+4*k2}:{VA+4*k2+3}], v[{VACC+4*t}:{VACC+4*t+3}]')
        A.e('s_nop 7')
        srd(A, 24, 32, 163840, WS_KV)
        A.e('v_add_u32 v11, s30, v12')
        A.e('v_lshrrev_b32 v15, 8, v11')
        A.e('v_mul_u32_u24 v15, 20480, v15')
        A.e('v_and_b32 v11, 255, v11')
        VPATH = A.newlabel('vp')
        A.e('s_cmp_eq_u32 s28, 7')
        A.e(f's_cbranch_scc1 {VPATH}')
        a = VACC
        A.e(f'v_cvt_pk_bf16_f32 v{a}, v{a}, v{a+1}')
        A.e(f'v_cvt_pk_bf16_f32 v{a+1}, v{a+2}, v{a+3}')
        A.e('v_lshl_add_u32 v3, v11, 5, v15')
        A.e('v_lshl_add_u32 v3, v13, 3, v3')
        A.e(f'buffer_store_dwordx2 v[{a}:{a+1}], v3, s[24:27], 0 offen')
        A.e(f'v_cvt_pk_bf16_f32 v{a+4}, v{a+4}, v{a+5}')
        A.e(f'v_mov_b32 v{a+5}, 0x3f80')
        A.e('v_lshl_add_u32 v3, v11, 3, v15')
        A.e('v_cmp_eq_u32 vcc, 0, v13')
        A.e('s_and_saveexec_b64 s[38:39], vcc')
        A.e(f'buffer_store_dwordx2 v[{a+4}:{a+5}], v3, s[24:27], 0 offen offset:0')
        A.lines[-1] = f'    buffer_store_dwordx2 v[{a+4}:{a+5}], v3, s[24:27], s37 offen'
        A.lines.insert(len(A.lines) - 2, '    s_mov_b32 s37, 8192')
        A.e('s_endpgm')
        A.label(VPATH)
        A.e('v_lshrrev_b32 v3, 4, v11')
        A.e('v_mul_u32_u24 v3, 640, v3')
        A.e('v_add_u32 v3, v3, v15')
        A.e('v_add_u32 v3, 10240, v3')
        A.e('v_bfe_u32 v7, v11, 2, 1')
        A.e('v_lshl_add_u32 v3, v7, 4, v3')
        A.e('v_and_b32 v7, 3, v11')
        A.e('v_lshl_add_u32 v3, v7, 1, v3')
        A.e('v_bfe_u32 v7, v11, 3, 1')
        A.e('v_lshl_add_u32 v3, v7, 3, v3')
        A.e('v_lshl_add_u32 v8, v13, 7, v3')
        a = VACC
        A.e(f'v_cvt_pk_bf16_f32 v{a}, v{a}, v{a+1}')
        A.e(f'v_cvt_pk_bf16_f32 v{a+1}, v{a+2}, v{a+3}')
        A.e(f'v_cvt_pk_bf16_f32 v{a+4}, v{a+4}, v{a+5}')
        A.e(f'v_mov_b32 v{a+5}, 0x3f80')
        A.e(f'buffer_store_short v{a}, v8, s[24:27], 0 offen offset:0')
        A.e(f'buffer_store_short_d16_hi v{a}, v8, s[24:27], 0 offen offset:32')
        A.e(f'buffer_store_short v{a+1}, v8, s[24:27], 0 offen offset:64')
        A.e(f'buffer_store_short_d16_hi v{a+1}, v8, s[24:27], 0 offen offset:96')
        A.e('v_cmp_eq_u32 vcc, 0, v13')
        A.e('s_and_saveexec_b64 s[38:39], vcc')
        A.e(f'buffer_store_short v{a+4}, v3, s[24:27], 0 offen offset:{16*32}')
        A.e(f'buffer_store_short_d16_hi v{a+4}, v3, s[24:27], 0 offen offset:{17*32}')
        A.e(f'buffer_store_short v{a+5}, v3, s[24:27], 0 offen offset:{18*32}')
        A.e(f'buffer_store_short_d16_hi v{a+5}, v3, s[24:27], 0 offen offset:{19*32}')
        A.e('s_endpgm')
    A.label(END)
    A.e('s_endpgm')
    A.lines.append(kdesc(name, 176, 48).rstrip())
    return nwg, 110592

if __name__ == '__main__':
    pass
```

```python
from asmlib import *
from gen import *

def attn(A, name):
    END = A.newlabel('end')
    A.lines.append(khead(name).rstrip())
    QA, QB = 8, 12
    KLO = [16, 20]; KHI = [24, 28]
    VV = [32, 40]
    SS = [48, 64]
    P = 80
    O = 88
    aK, aH, aV = 104, 105, 106
    nK, nH, nV = 107, 108, 109
    cK, cH, cV = 110, 111, 112
    T = 113
    A.e('s_cmp_ge_u32 s2, 256')
    A.e(f's_cbranch_scc1 {END}')
    A.e(f's_load_dwordx2 s[4:5], s[0:1], {KA["ws"]}')
    A.e('v_and_b32 v1, 63, v0')
    A.e('v_lshrrev_b32 v2, 6, v0')
    A.e('s_nop 0')
    A.e('v_readfirstlane_b32 s20, v2')
    A.e('v_and_b32 v2, 31, v1')
    A.e('v_lshrrev_b32 v3, 5, v1')
    A.e('s_lshl_b32 s21, s2, 3')
    A.e('s_add_u32 s21, s21, s20')
    A.e('s_mul_i32 s22, s21, 1152')
    A.e('v_mul_u32_u24 v4, 36, v2')
    A.e('v_add_u32 v4, s22, v4')
    A.e('v_lshl_add_u32 v5, v3, 4, v4')
    A.e('v_lshlrev_b32 v6, 4, v1')
    A.e('s_waitcnt lgkmcnt(0)')
    srd(A, 8, 4, XBYTES, WS_Q)
    srd(A, 12, 4, 163840, WS_KV)
    srd(A, 16, 4, XBYTES, WS_O)
    A.e(f'buffer_load_dwordx4 v[{QA}:{QA+3}], v5, s[8:11], 0 offen')
    A.e(f'buffer_load_dword v{QB}, v4, s[8:11], 0 offen offset:32')
    A.e('s_lshl_b32 s23, s20, 10')
    for n in range(20):
        A.e(f's_add_u32 s24, s23, {n*8192}')
        A.e('s_mov_b32 m0, s24')
        A.e('s_nop 0')
        A.e('buffer_load_dwordx4 v6, s[12:15], s24 offen lds')
    A.e(f'v_lshlrev_b32 v{cK}, 5, v2')
    A.e(f'v_lshl_add_u32 v{cK}, v3, 4, v{cK}')
    A.e(f'v_add_u32 v{cV}, 10240, v{cK}')
    A.e(f'v_lshlrev_b32 v{cH}, 3, v2')
    A.e(f'v_add_u32 v{cH}, 8192, v{cH}')
    for r in (KHI[0] + 2, KHI[0] + 3, KHI[1] + 2, KHI[1] + 3, QB + 1, QB + 2, QB + 3):
        A.e(f'v_mov_b32 v{r}, 0')
    A.e('v_cmp_eq_u32 s[26:27], 0, v3')
    A.e('s_mov_b32 s28, 1')
    A.e('s_waitcnt vmcnt(15)')
    A.e(f'v_cndmask_b32 v{QB}, 0, v{QB}, s[26:27]')
    A.e('s_barrier')
    A.e(f'ds_read_b128 v[{KLO[0]}:{KLO[0]+3}], v{cK}')
    A.e(f'ds_read_b64 v[{KHI[0]}:{KHI[0]+1}], v{cH}')
    A.e('s_waitcnt lgkmcnt(0)')
    s = SS[0]
    A.e(f'v_mfma_f32_32x32x16_bf16 v[{s}:{s+15}], v[{KLO[0]}:{KLO[0]+3}], v[{QA}:{QA+3}], 0')
    A.e(f'v_mfma_f32_32x32x16_bf16 v[{s}:{s+15}], v[{KHI[0]}:{KHI[0]+3}], v[{QB}:{QB+3}], v[{s}:{s+15}]')
    A.e('s_nop 15')
    A.e(f'v_max3_f32 v{T}, v{s}, v{s+1}, v{s+2}')
    for i in range(3, 15, 2):
        A.e(f'v_max3_f32 v{T}, v{T}, v{s+i}, v{s+i+1}')
    A.e(f'v_max_f32 v{T}, v{T}, v{s+15}')
    SETM = A.newlabel('setm')
    A.label(SETM)
    A.e(f'v_mov_b32 v{T+1}, v{T}')
    A.e('s_nop 1')
    A.e(f'v_permlane32_swap_b32 v{T}, v{T+1}')
    A.e(f'v_max_f32 v{T}, v{T}, v{T+1}')
    A.e(f'v_cvt_pk_bf16_f32 v{T}, v{T}, v{T}')
    A.e(f'v_and_b32 v{T}, 0xffff, v{T}')
    A.e(f'v_xor_b32 v{T}, 0x8000, v{T}')
    A.e(f'v_cndmask_b32 v{QB+1}, 0, v{T}, s[26:27]')
    for i in range(16):
        A.e(f'v_mov_b32 v{O+i}, 0')
    for i in range(4):
        A.e(f'v_mov_b32 v{P+4+i}, 0')
        A.e(f'v_mov_b32 v{VV[1]+4+i}, 0')
    for c_, a_, n_ in ((cK, aK, nK), (cH, aH, nH), (cV, aV, nV)):
        A.e(f'v_mov_b32 v{a_}, v{c_}')
        A.e(f'v_add_u32 v{n_}, 20480, v{c_}')
    A.e(f'ds_read_b128 v[{KLO[0]}:{KLO[0]+3}], v{cK}')
    A.e(f'ds_read_b64 v[{KHI[0]}:{KHI[0]+1}], v{cH}')
    A.e(f'ds_read_b128 v[{KLO[1]}:{KLO[1]+3}], v{cK} offset:1024')
    A.e(f'ds_read_b64 v[{KHI[1]}:{KHI[1]+1}], v{cH} offset:256')
    A.e(f'ds_read_b128 v[{VV[0]}:{VV[0]+3}], v{cV}')
    A.e(f'ds_read_b128 v[{VV[0]+4}:{VV[0]+7}], v{cV} offset:640')
    A.e('s_mov_b32 s29, 0')
    A.e('s_waitcnt lgkmcnt(4)')
    A.e(f'v_mfma_f32_32x32x16_bf16 v[{s}:{s+15}], v[{KLO[0]}:{KLO[0]+3}], v[{QA}:{QA+3}], 0')
    A.e(f'v_mfma_f32_32x32x16_bf16 v[{s}:{s+15}], v[{KHI[0]}:{KHI[0]+3}], v[{QB}:{QB+3}], v[{s}:{s+15}]')
    A.e('s_nop 7')
    LOOP = A.newlabel('loop')
    A.label(LOOP)
    for j in range(8):
        p = j % 2
        if j == 6:
            SK = A.newlabel('nosync'); L5 = A.newlabel('l5'); L0 = A.newlabel('l0'); LB = A.newlabel('lb')
            A.e('s_and_b32 s30, s29, s28')
            A.e('s_cmp_eq_u32 s30, 0')
            A.e(f's_cbranch_scc1 {SK}')
            A.e('s_cmp_eq_u32 s29, 7')
            A.e(f's_cbranch_scc1 {SK}')
            A.e('s_cmp_eq_u32 s29, 3')
            A.e(f's_cbranch_scc1 {L5}')
            A.e('s_cmp_eq_u32 s29, 5')
            A.e(f's_cbranch_scc1 {L0}')
            A.e('s_waitcnt vmcnt(10)')
            A.e(f's_branch {LB}')
            A.label(L5)
            A.e('s_waitcnt vmcnt(5)')
            A.e(f's_branch {LB}')
            A.label(L0)
            A.e('s_waitcnt vmcnt(0)')
            A.label(LB)
            A.e('s_barrier')
            A.label(SK)
        j2 = j + 2
        ak, ah = (aK, aH) if j2 < 8 else (nK, nH)
        A.e(f'ds_read_b128 v[{KLO[p]}:{KLO[p]+3}], v{ak} offset:{(j2%8)*1024}')
        A.e(f'ds_read_b64 v[{KHI[p]}:{KHI[p]+1}], v{ah} offset:{(j2%8)*256}')
        A.e(f'v_mfma_f32_32x32x16_bf16 v[{O}:{O+15}], v[{VV[1-p]+4}:{VV[1-p]+7}], v[{P+4}:{P+7}], v[{O}:{O+15}]')
        j1 = j + 1
        av = aV if j1 < 8 else nV
        A.e(f'ds_read_b128 v[{VV[1-p]}:{VV[1-p]+3}], v{av} offset:{(j1%8)*1280}')
        A.e(f'ds_read_b128 v[{VV[1-p]+4}:{VV[1-p]+7}], v{av} offset:{(j1%8)*1280+640}')
        A.e('s_waitcnt lgkmcnt(4)')
        sn = SS[1 - p]; sc = SS[p]
        A.e(f'v_mfma_f32_32x32x16_bf16 v[{sn}:{sn+15}], v[{KLO[1-p]}:{KLO[1-p]+3}], v[{QA}:{QA+3}], 0')
        for r in range(0, 4): A.e(f'v_exp_f32 v{sc+r}, v{sc+r}')
        A.e(f'v_mfma_f32_32x32x16_bf16 v[{sn}:{sn+15}], v[{KHI[1-p]}:{KHI[1-p]+3}], v[{QB}:{QB+3}], v[{sn}:{sn+15}]')
        for r in range(4, 8): A.e(f'v_exp_f32 v{sc+r}, v{sc+r}')
        for r in range(0, 4): A.e(f'v_cvt_pk_bf16_f32 v{P+r}, v{sc+2*r}, v{sc+2*r+1}')
        for r in range(8, 12): A.e(f'v_exp_f32 v{sc+r}, v{sc+r}')
        A.e(f'v_mfma_f32_32x32x16_bf16 v[{O}:{O+15}], v[{VV[p]}:{VV[p]+3}], v[{P}:{P+3}], v[{O}:{O+15}]')
        for r in range(12, 16): A.e(f'v_exp_f32 v{sc+r}, v{sc+r}')
        for r in range(4, 8): A.e(f'v_cvt_pk_bf16_f32 v{P+r}, v{sc+2*r}, v{sc+2*r+1}')
    A.e('s_add_u32 s29, s29, 1')
    A.e('s_add_u32 s30, s29, 1')
    A.e('s_and_b32 s30, s30, 7')
    A.e('s_mul_i32 s30, s30, 20480')
    for c_, a_, n_ in ((cK, aK, nK), (cH, aH, nH), (cV, aV, nV)):
        A.e(f'v_mov_b32 v{a_}, v{n_}')
        A.e(f'v_add_u32 v{n_}, s30, v{c_}')
    A.e('s_cmp_lt_u32 s29, 8')
    A.e(f's_cbranch_scc1 {LOOP}')
    A.e(f'v_mfma_f32_32x32x16_bf16 v[{O}:{O+15}], v[{VV[1]+4}:{VV[1]+7}], v[{P+4}:{P+7}], v[{O}:{O+15}]')
    A.e('s_waitcnt lgkmcnt(0)')
    A.e('s_nop 15')
    A.e('s_nop 3')
    EPI = A.newlabel('epi')
    A.e('s_movk_i32 s31, 0x207')
    A.e('s_mov_b64 s[32:33], 0')
    for r in range(11):
        A.e(f'v_cmp_class_f32 vcc, v{O+r}, s31' if False else f'v_cmp_class_f32 s[34:35], v{O+r}, s31')
        A.e('s_or_b64 s[32:33], s[32:33], s[34:35]')
    A.e('s_cmp_eq_u64 s[32:33], 0')
    A.e(f's_cbranch_scc1 {EPI}')
    A.e('s_cmp_eq_u32 s28, 0')
    A.e(f's_cbranch_scc1 {EPI}')
    A.e('s_mov_b32 s28, 0')
    A.e('s_waitcnt vmcnt(0)')
    A.e(f'v_mov_b32 v{QB+1}, 0')
    A.e(f'v_mov_b32 v{T}, 0xff800000')
    A.e(f'v_mov_b32 v{aK}, v{cK}')
    A.e(f'v_mov_b32 v{aH}, v{cH}')
    A.e('s_mov_b32 s29, 0')
    FL = A.newlabel('fl')
    A.label(FL)
    for j in range(8):
        A.e(f'ds_read_b128 v[{KLO[0]}:{KLO[0]+3}], v{aK} offset:{j*1024}')
        A.e(f'ds_read_b64 v[{KHI[0]}:{KHI[0]+1}], v{aH} offset:{j*256}')
        A.e('s_waitcnt lgkmcnt(0)')
        A.e(f'v_mfma_f32_32x32x16_bf16 v[{s}:{s+15}], v[{KLO[0]}:{KLO[0]+3}], v[{QA}:{QA+3}], 0')
        A.e(f'v_mfma_f32_32x32x16_bf16 v[{s}:{s+15}], v[{KHI[0]}:{KHI[0]+3}], v[{QB}:{QB+3}], v[{s}:{s+15}]')
        A.e('s_nop 15')
        for i in range(0, 16, 2):
            A.e(f'v_max3_f32 v{T}, v{T}, v{s+i}, v{s+i+1}')
    A.e(f'v_add_u32 v{aK}, 20480, v{aK}')
    A.e(f'v_add_u32 v{aH}, 20480, v{aH}')
    A.e('s_add_u32 s29, s29, 1')
    A.e('s_cmp_lt_u32 s29, 8')
    A.e(f's_cbranch_scc1 {FL}')
    A.e(f's_branch {SETM}')
    A.label(EPI)
    A.e(f'v_mov_b32 v{T}, v{O+10}')
    A.e(f'v_mov_b32 v{T+1}, v{O+10}')
    A.e('s_nop 1')
    A.e(f'v_permlane32_swap_b32 v{T}, v{T+1}')
    A.e(f'v_rcp_f32 v{T}, v{T}')
    A.e('s_nop 0')
    for r in range(10):
        A.e(f'v_mul_f32 v{O+r}, v{O+r}, v{T}')
    for r in range(5):
        A.e(f'v_cvt_pk_bf16_f32 v{P+r}, v{O+2*r}, v{O+2*r+1}')
    A.e('v_lshl_add_u32 v5, v3, 3, v4')
    A.e(f'buffer_store_dwordx2 v[{P}:{P+1}], v5, s[16:19], 0 offen')
    A.e(f'buffer_store_dwordx2 v[{P+2}:{P+3}], v5, s[16:19], 0 offen offset:16')
    A.e('s_and_b64 exec, exec, s[26:27]')
    A.e(f'buffer_store_dword v{P+4}, v4, s[16:19], 0 offen offset:32')
    A.label(END)
    A.e('s_endpgm')
    A.lines.append(kdesc(name, 120, 48).rstrip())
    return 256, 163840
```

```python
from asmlib import *
from gen import *

def k4(A, name, a_spec):
    END = A.newlabel('end')
    A.lines.append(khead(name).rstrip())
    VA, VB, VACC, VBA = 16, 88, 120, 152
    VT = 88
    A.e('s_cmp_ge_u32 s2, 256')
    A.e(f's_cbranch_scc1 {END}')
    offA = load_ptr(A, 4, a_spec)
    A.e(f's_load_dwordx2 s[6:7], s[0:1], {KA["B_wqkv"]}')
    A.e(f's_load_dwordx2 s[8:9], s[0:1], {KA["ws"]}')
    A.e('s_lshr_b32 s3, s2, 4')
    A.e('s_and_b32 s28, s2, 15')
    A.e('v_and_b32 v1, 63, v0')
    A.e('v_lshrrev_b32 v11, 6, v0')
    A.e('s_nop 0')
    A.e('v_readfirstlane_b32 s29, v11')
    A.e('v_and_b32 v12, 15, v1')
    A.e('v_lshrrev_b32 v13, 4, v1')
    A.e('s_add_u32 s30, s29, 1')
    A.e('s_cmp_eq_u32 s29, 8')
    A.e('s_cselect_b32 s30, 0, s30')
    A.e('s_lshl_b32 s31, s3, 7')
    A.e('s_lshl_b32 s32, s30, 4')
    A.e('s_add_u32 s32, s32, s31')
    A.e('s_sub_u32 s32, s32, 16')
    A.e('v_add_u32 v14, s32, v12')
    A.e('v_mul_i32_i24 v14, 1152, v14')
    A.e('v_lshl_add_u32 v2, v13, 4, v14')
    A.e('s_waitcnt lgkmcnt(0)')
    srd(A, 12, 4, XBYTES, offA)
    srd(A, 16, 6, D * 3 * D * 2)
    srd(A, 20, 8, XBYTES, WS_O)
    for ks in range(18):
        A.e(f'buffer_load_dwordx4 v[{VA+4*ks}:{VA+4*ks+3}], v2, s[12:15], 0 offen offset:{ks*64}')
    A.e('v_lshrrev_b32 v3, 4, v0')
    A.e('v_and_b32 v4, 15, v0')
    A.e('s_mul_i32 s33, s28, 72')
    A.e('s_lshl_b32 s34, s29, 10')
    for r in range(16):
        A.e(f'v_add_u32 v5, {r*36}, v3')
        A.e('v_and_b32 v6, 3, v5')
        A.e('v_bfe_u32 v7, v5, 3, 1')
        A.e('v_lshl_or_b32 v6, v7, 2, v6')
        A.e('v_lshlrev_b32 v6, 1, v6')
        A.e('v_xor_b32 v6, v4, v6')
        A.e('v_min_u32 v6, 14, v6')
        A.e('v_mul_u32_u24 v7, 13, v6')
        A.e('v_lshrrev_b32 v7, 6, v7')
        A.e('v_mul_u32_u24 v7, 1072, v7')
        A.e('v_lshl_add_u32 v7, v6, 4, v7')
        A.e('v_mul_u32_u24 v5, 3456, v5')
        A.e('v_add_u32 v5, v5, v7')
        A.e(f's_add_u32 m0, s34, {r*9216}')
        A.e('s_nop 0')
        A.e('buffer_load_dwordx4 v5, s[16:19], s33 offen lds')
    A.e('v_lshrrev_b32 v5, 2, v12')
    A.e('v_and_b32 v6, 3, v12')
    A.e('v_and_b32 v7, 1, v13')
    A.e('v_lshl_or_b32 v7, v7, 2, v5')
    A.e('v_lshl_add_u32 v5, v13, 3, v5')
    A.e('v_lshlrev_b32 v5, 8, v5')
    A.e('v_lshl_add_u32 v5, v6, 3, v5')
    for t in range(8):
        A.e(f'v_xor_b32 v6, {t}, v7')
        A.e(f'v_lshl_add_u32 v{VBA+t}, v6, 5, v5')
    for i in range(32):
        A.e(f'v_mov_b32 v{VACC+i}, 0')
    A.e('s_waitcnt vmcnt(16)')
    layernorm_regs(A, VA, 72, VT, 36)

    units = [(ks, hf) for ks in range(18) for hf in range(2)]
    def reads(u):
        ks, hf = units[u]
        buf = VB + 16 * (u % 2)
        for tt in range(4):
            t = 4 * hf + tt
            off = (ks % 8) * 8192
            A.e(f'ds_read_b64_tr_b16 v[{buf+4*tt}:{buf+4*tt+1}], v{VBA+t} offset:{off}')
            A.e(f'ds_read_b64_tr_b16 v[{buf+4*tt+2}:{buf+4*tt+3}], v{VBA+t} offset:{off+1024}')
    sync = {0: 12, 4: 8, 9: 4, 13: 0}
    def pre(u):
        ks, hf = units[u]
        if hf == 0 and ks in sync:
            A.e(f's_waitcnt vmcnt({sync[ks]})')
            A.e('s_barrier')
        if hf == 0 and ks in (8, 16):
            for t in range(8):
                A.e(f'v_add_u32 v{VBA+t}, 0x10000, v{VBA+t}')
    pre(0); reads(0)
    for u in range(len(units)):
        ks, hf = units[u]
        if u + 1 < len(units):
            pre(u + 1); reads(u + 1)
            A.e('s_waitcnt lgkmcnt(8)')
        else:
            A.e('s_waitcnt lgkmcnt(0)')
        buf = VB + 16 * (u % 2)
        for tt in range(4):
            a = VACC + 4 * (4 * hf + tt)
            A.e(f'v_mfma_f32_16x16x32_bf16 v[{a}:{a+3}], v[{buf+4*tt}:{buf+4*tt+3}], v[{VA+4*ks}:{VA+4*ks+3}], v[{a}:{a+3}]')
    A.e('s_nop 7')
    A.e('s_barrier')
    A.e('s_lshl_b32 s32, s30, 4')
    A.e('v_add_u32 v5, s32, v12')
    A.e('v_mul_u32_u24 v5, 264, v5')
    A.e('v_lshl_add_u32 v5, v13, 3, v5')
    for t in range(8):
        a = VACC + 4 * t
        A.e(f'v_cvt_pk_bf16_f32 v{a}, v{a}, v{a+1}')
        A.e(f'v_cvt_pk_bf16_f32 v{a+1}, v{a+2}, v{a+3}')
        A.e(f'ds_write_b64 v5, v[{a}:{a+1}] offset:{t*32}')
    A.e('s_waitcnt lgkmcnt(0)')
    A.e('s_barrier')
    A.e('s_cmp_eq_u32 s29, 8')
    A.e(f's_cbranch_scc1 {END}')
    Q = 16; K = 32; Vv = 72
    OACC = 112
    LG = 132
    A.e('v_and_b32 v2, 1, v1')
    A.e('v_bfe_u32 v3, v1, 1, 1')
    A.e('v_lshrrev_b32 v4, 2, v1')
    A.e('s_lshl_b32 s32, s29, 4')
    A.e('v_add_u32 v4, s32, v4')
    A.e('v_add_u32 v5, 16, v4')
    A.e('v_mul_u32_u24 v5, 264, v5')
    A.e('v_mul_u32_u24 v6, 36, v3')
    A.e('v_add_u32 v5, v5, v6')
    A.e('v_mul_u32_u24 v6, 2112, v2')
    A.e('v_sub_u32 v6, v5, v6')
    for ww in range(4):
        A.e(f'v_subrev_u32 v{8+ww}, {ww*528}, v6')
    def rd9(dst, base, dwo):
        for i in range(4):
            A.e(f'ds_read2_b32 v[{dst+2*i}:{dst+2*i+1}], v{base} offset0:{dwo+2*i} offset1:{dwo+2*i+1}')
        A.e(f'ds_read_b32 v{dst+8}, v{base} offset:{(dwo+8)*4}')
    rd9(Q, 5, 0)
    for ww in range(4):
        rd9(K + 10 * ww, 8 + ww, 20)
    A.e('s_waitcnt lgkmcnt(0)')
    for ww in range(4):
        rd9(Vv + 10 * ww, 8 + ww, 40)
    for ww in range(4):
        A.e(f'v_mov_b32 v{LG+ww}, 0')
    for i in range(9):
        for ww in range(4):
            A.e(f'v_dot2_f32_bf16 v{LG+ww}, v{Q+i}, v{K+10*ww+i}, v{LG+ww}')
    A.e('s_nop 3')
    A.e(f's_mov_b32 s35, 0x{f32bits(DH ** -0.5):x}')
    A.e('s_lshl_b32 s36, s3, 7')
    A.e('v_add_u32 v7, s36, v4')
    A.e('v_lshlrev_b32 v13, 3, v2')
    A.e(f'v_mov_b32 v14, 0x{f32bits(-1e9):x}')
    for ww in range(4):
        l = LG + ww
        A.e(f'v_cvt_pk_bf16_f32 v{l}, v{l}, v{l}')
        A.e(f'v_lshlrev_b32 v{l}, 16, v{l}')
        A.e(f'v_mul_f32 v{l}, s35, v{l}')
        A.e(f'v_cvt_pk_bf16_f32 v{l}, v{l}, v{l}')
        A.e(f'v_lshlrev_b32 v{l}, 16, v{l}')
        A.e(f'v_add_u32 v12, {2*ww}, v13')
        A.e('v_cmp_ge_u32 vcc, v7, v12')
        A.e('s_nop 1')
        A.e(f'v_cndmask_b32 v{l}, v14, v{l}, vcc')
    A.e(f'v_max3_f32 v12, v{LG}, v{LG+1}, v{LG+2}')
    A.e(f'v_max_f32 v12, v12, v{LG+3}')
    A.e('s_nop 1')
    A.e('v_max_f32_dpp v12, v12, v12 quad_perm:[1,0,3,2] row_mask:0xf bank_mask:0xf')
    A.e(f's_mov_b32 s35, 0x{f32bits(math.log2(math.e)):x}')
    for ww in range(4):
        l = LG + ww
        A.e(f'v_sub_f32 v{l}, v{l}, v12')
        A.e(f'v_mul_f32 v{l}, s35, v{l}')
        A.e(f'v_exp_f32 v{l}, v{l}')
    A.e('s_nop 0')
    A.e(f'v_add_f32 v13, v{LG}, v{LG+1}')
    A.e(f'v_add_f32 v14, v{LG+2}, v{LG+3}')
    A.e('v_add_f32 v13, v13, v14')
    A.e('s_nop 1')
    A.e('v_add_f32_dpp v13, v13, v13 quad_perm:[1,0,3,2] row_mask:0xf bank_mask:0xf')
    A.e('v_rcp_f32 v13, v13')
    A.e('s_nop 0')
    for ww in range(4):
        l = LG + ww
        A.e(f'v_mul_f32 v{l}, v{l}, v13')
        A.e(f'v_cvt_pk_bf16_f32 v{l}, v{l}, v{l}')
        A.e(f'v_lshlrev_b32 v{l}, 16, v{l}')
    A.e('s_mov_b32 s35, 0xffff0000')
    A.e('s_waitcnt lgkmcnt(0)')
    for ww in range(4):
        for i in range(9):
            v = Vv + 10 * ww + i
            A.e(f'v_lshlrev_b32 v12, 16, v{v}')
            A.e(f'v_and_b32 v13, s35, v{v}')
            if ww == 0:
                A.e(f'v_mul_f32 v{OACC+2*i}, v12, v{LG}')
                A.e(f'v_mul_f32 v{OACC+2*i+1}, v13, v{LG}')
            else:
                A.e(f'v_fmac_f32 v{OACC+2*i}, v12, v{LG+ww}')
                A.e(f'v_fmac_f32 v{OACC+2*i+1}, v13, v{LG+ww}')
    A.e('s_nop 1')
    for i in range(18):
        A.e(f'v_add_f32_dpp v{OACC+i}, v{OACC+i}, v{OACC+i} quad_perm:[1,0,3,2] row_mask:0xf bank_mask:0xf')
    for i in range(9):
        A.e(f'v_cvt_pk_bf16_f32 v{Q+i}, v{OACC+2*i}, v{OACC+2*i+1}')
    A.e('v_mul_u32_u24 v7, 1152, v7')
    A.e('v_mul_u32_u24 v12, 36, v3')
    A.e('v_add_u32 v7, v7, v12')
    A.e('s_mul_i32 s33, s28, 72')
    A.e('v_cmp_eq_u32 vcc, 0, v2')
    A.e('s_and_saveexec_b64 s[38:39], vcc')
    A.e(f'buffer_store_dwordx4 v[{Q}:{Q+3}], v7, s[20:23], s33 offen')
    A.e(f'buffer_store_dwordx4 v[{Q+4}:{Q+7}], v7, s[20:23], s33 offen offset:16')
    A.e(f'buffer_store_dword v{Q+8}, v7, s[20:23], s33 offen offset:32')
    A.label(END)
    A.e('s_endpgm')
    A.lines.append(kdesc(name, 160, 48).rstrip())
    return 256, 147456
```

```python
import sys
from asmlib import *
from gen import *
from gen_attn import attn
from gen_k4 import k4
HDR = open('interleave_layers__grouped_kv_mqa__sliding_local_dilated__prompt.s.ref').read().split('; Override launch')[0]
def build(path):
    A = Asm()
    L = []
    def add(name, r, blk): L.append((name, r[0], blk, r[1]))
    add('qkva1_kernel', gemm96(A, 'qkva1_kernel', 'qkv', ('k', 'A_x'), 'A_wq'), 256)
    add('attn_kernel', attn(A, 'attn_kernel'), 512)
    add('outa1_kernel', gemm96(A, 'outa1_kernel', 'out', ('w', WS_O), 'A_wo', ('k', 'A_x'), ('w', WS_XA)), 256)
    add('qkvb1_kernel', k4(A, 'qkvb1_kernel', ('w', WS_XA)), 576)
    add('outb1_kernel', gemm96(A, 'outb1_kernel', 'out', ('w', WS_O), 'B_wo', ('w', WS_XA), ('w', WS_XB)), 256)
    add('qkva2_kernel', gemm96(A, 'qkva2_kernel', 'qkv', ('w', WS_XB), 'A_wq'), 256)
    L.append(L[1])
    add('outa2_kernel', gemm96(A, 'outa2_kernel', 'out', ('w', WS_O), 'A_wo', ('w', WS_XB), ('w', WS_XC)), 256)
    add('qkvb2_kernel', k4(A, 'qkvb2_kernel', ('w', WS_XC)), 576)
    add('outb2_kernel', gemm96(A, 'outb2_kernel', 'out', ('w', WS_O), 'B_wo', ('w', WS_XC), ('k', 'out')), 256)
    out = HDR
    for (n, g, b, l) in L:
        out += f'; @launch kernel={n} grid=({g},1,1) block=({b},1,1) lds={l}\n'
    out += '.amdgcn_target "amdgcn-amd-amdhsa--gfx950"\n.text\n' + A.text()
    open(path, 'w').write(out)
if __name__ == '__main__':
    build(sys.argv[1] if len(sys.argv) > 1 else 'interleave_layers__grouped_kv_mqa__sliding_local_dilated__prompt.s')
```

```python
import sys, math, struct, os
from asmlib import *

S = 2048; D = 576; H = 32; DH = 18
XBYTES = S * D * 2
WS_XA, WS_XB, WS_XC, WS_Q, WS_O, WS_KV = 0x0, 0x240000, 0x480000, 0x6C0000, 0x900000, 0xB40000
WS_XF = 0xD00000
WS_WQ, WS_WOA, WS_WOB, WS_WK, WS_WV, WS_WQKV = 0x1000000, 0x10A2000, 0x1144000, 0x11E6000, 0x11EF000, 0x1200000
WS_ST = 0x1400000
WS_CS = 0x1420000
CS_Q, CS_K, CS_V, CS_QKV = 0, 2304, 2432, 2560
CS_BYTES = 2560 + 1728 * 4
EXP = os.environ.get('EXP', '')
KA = dict(A_x=0, A_wq=8, A_wk=16, A_wv=24, A_wo=32, B_x=40, B_wqkv=48, B_wo=56, out=64, dbg=72, ws=80)
QSCALE = (DH ** -0.5) * math.log2(math.e)
def f32bits(x): return struct.unpack('<I', struct.pack('<f', x))[0]

def load_ptr(A, sdst, spec):
    if spec[0] == 'k':
        A.e(f's_load_dwordx2 s[{sdst}:{sdst+1}], s[0:1], {KA[spec[1]]}')
        return 0
    A.e(f's_load_dwordx2 s[{sdst}:{sdst+1}], s[0:1], {KA["ws"]}')
    return spec[1]

STAMP_BASE = 54
def stamp(A, i):
    if 'stamp' in os.environ.get('EXP', ''):
        A.e(f's_memtime s[{STAMP_BASE+2*i}:{STAMP_BASE+2*i+1}]')
def stamp_flush(A, n, sws):
    if 'stamp' not in os.environ.get('EXP', ''): return
    A.e('s_waitcnt lgkmcnt(0) vmcnt(0)')
    srd(A, 88, sws, 0x100000, 0xC00000)
    A.e('v_cmp_eq_u32 vcc, 0, v0')
    A.e('s_and_saveexec_b64 s[92:93], vcc')
    A.e('s_lshl_b32 s94, s2, 6')
    A.e('v_mov_b32 v1, s94')
    for i in range(n):
        A.e(f'v_mov_b32 v2, s{STAMP_BASE+2*i}')
        A.e(f'buffer_store_dword v2, v1, s[88:91], 0 offen offset:{4*i}')
    A.e('s_mov_b64 exec, s[92:93]')

def layernorm_regs(A, va, nreg, vt, sone):
    s0, q0 = vt, vt + 4
    A.e(f's_mov_b32 s{sone}, 0x3f803f80')
    for i in range(4):
        A.e(f'v_mov_b32 v{s0+i}, 0')
        A.e(f'v_mov_b32 v{q0+i}, 0')
    for i in range(nreg):
        A.e(f'v_dot2_f32_bf16 v{s0+i%4}, v{va+i}, s{sone}, v{s0+i%4}')
        A.e(f'v_dot2_f32_bf16 v{q0+i%4}, v{va+i}, v{va+i}, v{q0+i%4}')
    A.e('s_nop 3')
    A.e(f'v_add_f32 v{s0}, v{s0}, v{s0+1}')
    A.e(f'v_add_f32 v{s0+2}, v{s0+2}, v{s0+3}')
    A.e(f'v_add_f32 v{q0}, v{q0}, v{q0+1}')
    A.e(f'v_add_f32 v{q0+2}, v{q0+2}, v{q0+3}')
    A.e(f'v_add_f32 v{s0}, v{s0}, v{s0+2}')
    A.e(f'v_add_f32 v{q0}, v{q0}, v{q0+2}')
    for op in ('v_permlane32_swap_b32', 'v_permlane16_swap_b32'):
        A.e(f'v_mov_b32 v{s0+1}, v{s0}')
        A.e(f'v_mov_b32 v{q0+1}, v{q0}')
        A.e('s_nop 1')
        A.e(f'{op} v{s0}, v{s0+1}')
        A.e(f'{op} v{q0}, v{q0+1}')
        A.e(f'v_add_f32 v{s0}, v{s0}, v{s0+1}')
        A.e(f'v_add_f32 v{q0}, v{q0}, v{q0+1}')
    inv = f32bits(1.0 / D)
    A.e(f's_mov_b32 s{sone}, 0x{inv:x}')
    A.e(f'v_mul_f32 v{s0}, s{sone}, v{s0}')
    A.e(f'v_mul_f32 v{q0}, s{sone}, v{q0}')
    A.e(f'v_fma_f32 v{q0}, -v{s0}, v{s0}, v{q0}')
    A.e(f'v_max_f32 v{q0}, 0, v{q0}')
    A.e(f'v_cvt_pk_bf16_f32 v{s0+1}, v{s0}, v{q0}')
    A.e(f'v_lshlrev_b32 v{s0}, 16, v{s0+1}')
    A.e(f'v_and_b32 v{q0}, 0xffff0000, v{s0+1}')
    A.e(f'v_add_f32 v{q0}, 0x{f32bits(1e-5):x}, v{q0}')
    A.e(f'v_cvt_pk_bf16_f32 v{q0}, v{q0}, v{q0}')
    A.e(f'v_lshlrev_b32 v{q0}, 16, v{q0}')
    A.e(f'v_sqrt_f32 v{q0}, v{q0}')
    A.e('s_nop 0')
    A.e(f'v_cvt_pk_bf16_f32 v{q0}, v{q0}, v{q0}')
    A.e(f'v_lshlrev_b32 v{q0}, 16, v{q0}')
    A.e(f'v_rcp_f32 v{q0}, v{q0}')
    A.e('s_nop 0')
    A.e(f'v_mul_f32 v{s0}, v{s0}, v{q0}')
    A.e(f's_mov_b32 s{sone}, 0xffff0000')
    t0 = vt + 8
    for i in range(nreg):
        a = va + i; t = t0 + (i % 2) * 2
        A.e(f'v_lshlrev_b32 v{t}, 16, v{a}')
        A.e(f'v_and_b32 v{t+1}, s{sone}, v{a}')
        A.e(f'v_fma_f32 v{t}, v{t}, v{q0}, -v{s0}')
        A.e(f'v_fma_f32 v{t+1}, v{t+1}, v{q0}, -v{s0}')
        A.e(f'v_cvt_pk_bf16_f32 v{a}, v{t}, v{t+1}')


class VM:
    def __init__(self): self.ops = []
    def add(self, tag): self.ops.append(tag)
    def wait_for(self, A, pred):
        last = max([i for i, t in enumerate(self.ops) if pred(t)], default=-1)
        n = len(self.ops) - 1 - last
        A.e(f's_waitcnt vmcnt({min(n, 63)})')

def reduce_g(A, regs, tmp):
    for op in ('v_permlane32_swap_b32', 'v_permlane16_swap_b32'):
        for r, t in zip(regs, tmp): A.e(f'v_mov_b32 v{t}, v{r}')
        A.e('s_nop 1')
        for r, t in zip(regs, tmp): A.e(f'{op} v{r}, v{t}')
        for r, t in zip(regs, tmp): A.e(f'v_add_f32 v{r}, v{r}, v{t}')

def stats_final(A, vs, sfree):
    for i in range(1, 6):
        A.e(f'v_add_f32 v{vs}, v{vs}, v{vs+2*i}')
        A.e(f'v_add_f32 v{vs+1}, v{vs+1}, v{vs+2*i+1}')
    s0, q0 = vs, vs + 1
    A.e(f's_mov_b32 s{sfree}, 0x{f32bits(1.0 / D):x}')
    A.e(f'v_mul_f32 v{s0}, s{sfree}, v{s0}')
    A.e(f'v_mul_f32 v{q0}, s{sfree}, v{q0}')
    A.e(f'v_fma_f32 v{q0}, -v{s0}, v{s0}, v{q0}')
    A.e(f'v_max_f32 v{q0}, 0, v{q0}')
    A.e(f'v_cvt_pk_bf16_f32 v{vs+2}, v{s0}, v{q0}')
    A.e(f'v_lshlrev_b32 v{s0}, 16, v{vs+2}')
    A.e(f'v_and_b32 v{q0}, 0xffff0000, v{vs+2}')
    A.e(f'v_add_f32 v{q0}, 0x{f32bits(1e-5):x}, v{q0}')
    A.e(f'v_cvt_pk_bf16_f32 v{q0}, v{q0}, v{q0}')
    A.e(f'v_lshlrev_b32 v{q0}, 16, v{q0}')
    A.e(f'v_sqrt_f32 v{q0}, v{q0}')
    A.e('s_nop 0')
    A.e(f'v_cvt_pk_bf16_f32 v{q0}, v{q0}, v{q0}')
    A.e(f'v_lshlrev_b32 v{q0}, 16, v{q0}')
    A.e(f'v_rcp_f32 v{q0}, v{q0}')
    A.e('s_nop 0')

def udiv(A, sd, ss, d, maxv):
    sh = 16
    while True:
        m = -(-(1 << sh) // d)
        if all((x * m) >> sh == x // d for x in range(maxv + 1)) and maxv * m < (1 << 32): break
        sh += 1
    A.e(f's_mul_i32 s{sd}, s{ss}, {m}')
    A.e(f's_lshr_b32 s{sd}, s{sd}, {sh}')

def prep(A, name):
    END = A.newlabel('end'); LW = A.newlabel('w576'); LKV = A.newlabel('wkv'); LQKV = A.newlabel('wqkv'); GATH = A.newlabel('gath')
    LX = A.newlabel('lx'); LCS2 = A.newlabel('cs2'); LCS3 = A.newlabel('cs3'); LCSL = A.newlabel('csl')
    NCS, NX, NG = 7, 32, 180
    A.lines.append(khead(name).rstrip())
    A.e(f's_cmp_ge_u32 s2, {NCS + NX + NG}')
    A.e(f's_cbranch_scc1 {END}')
    A.e('s_load_dwordx16 s[8:23], s[0:1], 0')
    A.e(f's_load_dwordx2 s[24:25], s[0:1], {KA["ws"]}')
    A.e('v_and_b32 v1, 63, v0')
    A.e('v_lshrrev_b32 v2, 6, v0')
    A.e('s_nop 0')
    A.e('v_readfirstlane_b32 s3, v2')
    A.e('v_and_b32 v2, 15, v1')
    A.e('v_lshrrev_b32 v3, 4, v1')
    A.e('v_lshlrev_b32 v4, 4, v1')
    A.e('s_waitcnt lgkmcnt(0)')
    A.e(f's_cmp_ge_u32 s2, {NCS}')
    A.e(f's_cbranch_scc1 {LX}')
    A.e('s_mov_b32 s31, 0x00020000')
    A.e('s_cmp_ge_u32 s2, 5')
    A.e(f's_cbranch_scc1 {LCS2}')
    A.e('s_mov_b32 s28, s10'); A.e('s_mov_b32 s29, s11'); A.e(f's_mov_b32 s30, {D*D*2}')
    A.e('s_movk_i32 s40, 1152'); A.e('s_lshl_b32 s36, s2, 7'); A.e('s_movk_i32 s37, 576'); A.e(f's_movk_i32 s38, {CS_Q}')
    A.e(f's_branch {LCSL}')
    A.label(LCS2)
    A.e('s_cmp_eq_u32 s2, 6')
    A.e('s_cselect_b32 s28, s14, s12'); A.e('s_cselect_b32 s29, s15, s13'); A.e(f's_cselect_b32 s38, 128, 0'); A.e(f's_add_u32 s38, s38, {CS_K}')
    A.e(f's_mov_b32 s30, {D*DH*2}')
    A.e('s_movk_i32 s40, 36'); A.e('s_mov_b32 s36, 0'); A.e('s_movk_i32 s37, 18')
    A.label(LCSL)
    for e in range(16):
        A.e(f's_mul_i32 s{48+e}, s40, {e}')
    A.e('v_lshl_add_u32 v5, v1, 1, s36')
    A.e('s_mul_i32 s41, s3, 144')
    A.e('s_mul_i32 s41, s41, s40')
    A.e('v_lshl_add_u32 v6, v5, 1, s41')
    A.e('s_lshl_b32 s41, s40, 4')
    A.e('v_mov_b32 v8, 0'); A.e('v_mov_b32 v9, 0')
    A.e('s_mov_b32 s42, 0xffff0000')
    A.e('s_mov_b32 s43, 0')
    LP = A.newlabel('cslp')
    A.label(LP)
    for e in range(16):
        A.e(f'buffer_load_dword v{16+e}, v6, s[28:31], s{48+e} offen')
    A.e('v_add_u32 v6, s41, v6')
    for e in range(16):
        A.e(f's_waitcnt vmcnt({15-e})')
        A.e(f'v_lshlrev_b32 v10, 16, v{16+e}')
        A.e(f'v_and_b32 v11, s42, v{16+e}')
        A.e('v_add_f32 v8, v8, v10')
        A.e('v_add_f32 v9, v9, v11')
    A.e('s_add_u32 s43, s43, 1')
    A.e('s_cmp_lt_u32 s43, 9')
    A.e(f's_cbranch_scc1 {LP}')
    A.e('v_lshlrev_b32 v7, 3, v0')
    A.e('ds_write_b64 v7, v[8:9]')
    A.e('s_waitcnt lgkmcnt(0)')
    A.e('s_barrier')
    A.e('s_cmp_lg_u32 s3, 0')
    A.e(f's_cbranch_scc1 {END}')
    for p in range(1, 4):
        A.e(f'ds_read_b64 v[{8+2*p}:{9+2*p}], v7 offset:{p*512}')
    srd(A, 32, 24, CS_BYTES, WS_CS)
    A.e('s_waitcnt lgkmcnt(0)')
    for p in range(1, 4):
        A.e(f'v_add_f32 v8, v8, v{8+2*p}')
        A.e(f'v_add_f32 v9, v9, v{9+2*p}')
    A.e('v_lshlrev_b32 v6, 2, v5')
    A.e('v_cmp_gt_u32 vcc, s37, v5')
    A.e('s_and_saveexec_b64 s[44:45], vcc')
    A.e('buffer_store_dwordx2 v[8:9], v6, s[32:35], s38 offen')
    A.e('s_endpgm')
    A.label(LX)
    A.e(f's_cmp_ge_u32 s2, {NCS + NX}')
    A.e(f's_cbranch_scc1 {LW}')
    A.e(f's_sub_u32 s5, s2, {NCS}')
    A.e('s_lshl_b32 s5, s5, 2')
    A.e('s_add_u32 s5, s5, s3')
    srd(A, 28, 8, XBYTES)
    srd(A, 32, 24, XBYTES, WS_XF)
    srd(A, 36, 24, 98304, WS_ST)
    A.e('s_lshl_b32 s6, s5, 4')
    A.e('v_add_u32 v7, s6, v2')
    A.e('v_mul_u32_u24 v5, 1152, v7')
    A.e('v_lshl_add_u32 v5, v3, 4, v5')
    for ks in range(18):
        A.e(f'buffer_load_dwordx4 v[{16+4*ks}:{19+4*ks}], v5, s[28:31], 0 offen offset:{ks*64}')
    A.e('s_mul_i32 s7, s5, 18432')
    A.e('v_add_u32 v6, s7, v4')
    A.e('s_mov_b32 s40, 0x3f803f80')
    for i in range(8): A.e(f'v_mov_b32 v{8+i}, 0')
    for ks in range(18):
        A.e(f's_waitcnt vmcnt({17-ks})' if ks == 0 else f's_waitcnt vmcnt({17})')
        A.e(f's_mov_b32 s41, {ks*1024}')
        A.e(f'buffer_store_dwordx4 v[{16+4*ks}:{19+4*ks}], v6, s[32:35], s41 offen')
        for i in range(4):
            A.e(f'v_dot2_f32_bf16 v{8+i}, v{16+4*ks+i}, s40, v{8+i}')
            A.e(f'v_dot2_f32_bf16 v{12+i}, v{16+4*ks+i}, v{16+4*ks+i}, v{12+i}')
    A.e('s_nop 3')
    for i in range(1, 4):
        A.e(f'v_add_f32 v8, v8, v{8+i}')
        A.e(f'v_add_f32 v12, v12, v{12+i}')
    A.e('v_mov_b32 v9, v12')
    reduce_g(A, [8, 9], [10, 11])
    for i in range(10, 20): A.e(f'v_mov_b32 v{i}, 0')
    A.e('v_mul_u32_u24 v7, 48, v7')
    A.e('v_cmp_eq_u32 vcc, 0, v3')
    A.e('s_and_saveexec_b64 s[44:45], vcc')
    for i in range(3):
        A.e(f'buffer_store_dwordx4 v[{8+4*i}:{11+4*i}], v7, s[36:39], 0 offen offset:{16*i}')
    A.e('s_endpgm')
    A.label(LW)
    A.e(f's_sub_u32 s4, s2, {NCS + NX}')
    A.e('s_lshl_b32 s4, s4, 2')
    A.e('s_add_u32 s4, s4, s3')
    A.e('s_cmp_ge_u32 s4, 648')
    A.e(f's_cbranch_scc1 {LKV}')
    udiv(A, 5, 4, 648, 1944)
    A.e('s_mul_i32 s6, s5, 648')
    A.e('s_sub_u32 s6, s4, s6')
    A.e('s_cmp_eq_u32 s5, 1')
    A.e('s_cselect_b32 s28, s16, s10')
    A.e('s_cselect_b32 s29, s17, s11')
    A.e('s_cmp_eq_u32 s5, 2')
    A.e('s_cselect_b32 s28, s22, s28')
    A.e('s_cselect_b32 s29, s23, s29')
    A.e(f's_mov_b32 s30, {D*D*2}')
    A.e('s_mov_b32 s31, 0x00020000')
    A.e(f's_mul_i32 s7, s5, {WS_WOA-WS_WQ}')
    A.e('s_lshl_b32 s26, s6, 10')
    A.e('s_add_u32 s7, s7, s26')
    A.e(f's_add_u32 s7, s7, {WS_WQ}')
    udiv(A, 36, 6, 108, 648)
    A.e('s_mul_i32 s37, s36, 108')
    A.e('s_sub_u32 s37, s6, s37')
    udiv(A, 38, 37, 6, 108)
    A.e('s_mul_i32 s39, s38, 6')
    A.e('s_sub_u32 s39, s37, s39')
    A.e('s_mul_i32 s36, s36, 96')
    A.e('s_lshl_b32 s39, s39, 4')
    A.e('s_add_u32 s36, s36, s39')
    A.e('v_add_u32 v5, s36, v2')
    A.e('v_lshlrev_b32 v5, 1, v5')
    A.e('s_movk_i32 s40, 1152')
    A.e(f's_branch {GATH}')
    A.label(LKV)
    A.e('s_sub_u32 s4, s4, 648')
    A.e('s_cmp_ge_u32 s4, 36')
    A.e('s_cselect_b32 s28, s14, s12')
    A.e('s_cselect_b32 s29, s15, s13')
    A.e(f's_mov_b32 s30, {D*DH*2}')
    A.e('s_mov_b32 s31, 0x00020000')
    A.e('s_lshl_b32 s7, s4, 10')
    A.e(f's_add_u32 s7, s7, {WS_WK}')
    A.e('s_cmp_ge_u32 s4, 36')
    A.e('s_cselect_b32 s6, 36, 0')
    A.e('s_sub_u32 s6, s4, s6')
    A.e('s_lshr_b32 s38, s6, 1')
    A.e('s_and_b32 s39, s6, 1')
    A.e('s_lshl_b32 s39, s39, 4')
    A.e('v_add_u32 v5, s39, v2')
    A.e('v_cmp_gt_u32 vcc, 18, v5')
    A.e('v_lshlrev_b32 v5, 1, v5')
    A.e('v_mov_b32 v6, 0x7f000000')
    A.e('v_cndmask_b32 v5, v6, v5, vcc')
    A.e('s_movk_i32 s40, 36')
    A.e(f's_branch {GATH}')
    A.label(GATH)
    A.e('s_lshl_b32 s38, s38, 5')
    A.e('v_lshl_add_u32 v6, v3, 3, s38')
    A.e('v_mul_lo_u32 v6, v6, s40')
    A.e('v_add_u32 v5, v5, v6')
    for e in range(8):
        A.e(f's_mul_i32 s41, s40, {e}')
        A.e(f'buffer_load_ushort v{16+e}, v5, s[28:31], s41 offen')
    srd(A, 32, 24, 0x1400000)
    A.e('s_waitcnt vmcnt(0)')
    for e in range(4):
        A.e(f'v_lshl_or_b32 v{8+e}, v{17+2*e}, 16, v{16+2*e}')
    A.e('buffer_store_dwordx4 v[8:11], v4, s[32:35], s7 offen')
    A.label(END)
    A.e('s_endpgm')
    A.lines.append(kdesc(name, 88, 72).rstrip())
    return NCS + NX + NG, 2048

def gemm96(A, name, mode, a_off, w_off, xin_off=None, out_spec=None):
    ncol = 6 if mode == 'out' else 8
    nwg = 32 * ncol
    END = A.newlabel('end')
    A.lines.append(khead(name).rstrip())
    A.e(f's_cmp_ge_u32 s2, {nwg}')
    A.e(f's_cbranch_scc1 {END}')
    stamp(A, 0)
    A.e(f's_load_dwordx2 s[4:5], s[0:1], {KA["ws"]}')
    final = mode == 'out' and out_spec[0] == 'k'
    if final:
        A.e(f's_load_dwordx2 s[10:11], s[0:1], {KA["out"]}')
    if mode == 'out':
        A.e('s_lshr_b32 s28, s2, 3')
        A.e('s_mul_i32 s3, s28, 43691')
        A.e('s_lshr_b32 s3, s3, 18')
        A.e('s_mul_i32 s29, s3, 6')
        A.e('s_sub_u32 s28, s28, s29')
        A.e('s_and_b32 s29, s2, 7')
        A.e('s_lshl_b32 s29, s29, 2')
        A.e('s_add_u32 s3, s3, s29')
    else:
        A.e('s_and_b32 s3, s2, 7')
        A.e('s_lshl_b32 s3, s3, 2')
        A.e('s_lshr_b32 s28, s2, 6')
        A.e('s_add_u32 s3, s3, s28')
        A.e('s_bfe_u32 s28, s2, 0x30003')
    A.e('v_and_b32 v1, 63, v0')
    A.e('v_lshrrev_b32 v11, 6, v0')
    A.e('s_nop 0')
    A.e('v_readfirstlane_b32 s29, v11')
    A.e('v_and_b32 v12, 15, v1')
    A.e('v_lshrrev_b32 v13, 4, v1')
    A.e('v_lshlrev_b32 v4, 4, v1')
    A.e('s_lshl_b32 s30, s3, 2')
    A.e('s_add_u32 s30, s30, s29')
    A.e('s_mul_i32 s31, s30, 18432')
    A.e('v_add_u32 v2, s31, v4')
    for j in range(1, 5):
        A.e(f's_mov_b32 s{40+j}, {j*4096}')
    A.e('s_mov_b32 s40, 0')
    A.e('s_waitcnt lgkmcnt(0)')
    srd(A, 12, 4, XBYTES, a_off)
    VA, VB, VACC, VX = 16, 88, 136, 160
    VCS = 172
    def aload(ks):
        A.e(f'buffer_load_dwordx4 v[{VA+4*ks}:{VA+4*ks+3}], v2, s[12:15], s{40+ks//4} offen offset:{(ks%4)*1024}')
    def wdma(r):
        A.e(f's_add_u32 m0, s34, {r*4096}')
        A.e(f's_add_u32 s35, s33, {r*4096}')
        A.e('buffer_load_dwordx4 v4, s[16:19], s35 offen lds')
    def stats_cs_loads(ntile, cs_sreg):
        srd(A, 20, 4, 98304, WS_ST)
        srd(A, 48, 4, CS_BYTES, WS_CS)
        A.e('s_lshl_b32 s36, s30, 4')
        A.e('v_add_u32 v3, s36, v12')
        A.e('v_mul_u32_u24 v3, 48, v3')
        for i in range(3):
            A.e(f'buffer_load_dwordx4 v[{VX+4*i}:{VX+4*i+3}], v3, s[20:23], 0 offen offset:{16*i}')
        A.e('v_lshlrev_b32 v3, 4, v13')
        for t in range(ntile):
            A.e(f'buffer_load_dwordx4 v[{VCS+4*t}:{VCS+4*t+3}], v3, s[48:51], s{cs_sreg} offen offset:{64*t}')
    KVPATH = A.newlabel('kv')
    A.e('s_lshl_b32 s34, s29, 10')
    if mode == 'qkv':
        A.e('s_cmp_ge_u32 s28, 6')
        A.e(f's_cbranch_scc1 {KVPATH}')
    srd(A, 16, 4, 6 * 110592, w_off)
    A.e('s_mul_i32 s33, s28, 110592')
    A.e('s_add_u32 s33, s33, s34')
    vm = VM()
    NST, PF = 9, 3
    def issue_stage(st):
        for ks in (2 * st, 2 * st + 1):
            aload(ks); vm.add(st)
        for r in range(3 * st, 3 * st + 3):
            wdma(r); vm.add(st)
    def issue_aux():
        if mode == 'out':
            srd(A, 20, 4, XBYTES, xin_off)
            A.e('v_lshrrev_b32 v3, 1, v13')
            A.e('v_lshlrev_b32 v3, 8, v3')
            A.e('v_lshl_add_u32 v3, v12, 4, v3')
            A.e('v_and_b32 v11, 1, v13')
            A.e('v_lshl_add_u32 v3, v11, 3, v3')
            A.e('s_mul_i32 s36, s28, 3072')
            A.e('s_add_u32 s36, s36, s31')
            A.e('v_add_u32 v3, s36, v3')
            for t in range(6):
                A.e(f'buffer_load_dwordx2 v[{VX+2*t}:{VX+2*t+1}], v3, s[20:23], 0 offen offset:{t*512}'); vm.add('aux')
        else:
            A.e('s_mul_i32 s37, s28, 384')
            stats_cs_loads(6, 37)
            for i in range(9): vm.add('aux')
    for st in range(PF): issue_stage(st)
    A.e(f'v_add_u32 v5, {9*6144}, v4')
    for i in range(24):
        A.e(f'v_mov_b32 v{VACC+i}, 0')
    stamp(A, 1)
    def breads(ks):
        buf = VB + 24 * (ks % 2)
        for t in range(6):
            base = 4 if ks < 9 else 5
            A.e(f'ds_read_b128 v[{buf+4*t}:{buf+4*t+3}], v{base} offset:{((ks % 9) * 6 + t) * 1024}')
    def mfmas(ks):
        buf = VB + 24 * (ks % 2)
        for t in range(6):
            A.e(f'v_mfma_f32_16x16x32_bf16 v[{VACC+4*t}:{VACC+4*t+3}], v[{buf+4*t}:{buf+4*t+3}], v[{VA+4*ks}:{VA+4*ks+3}], v[{VACC+4*t}:{VACC+4*t+3}]')
    for st in range(NST):
        vm.wait_for(A, lambda t: t == st)
        A.e('s_barrier')
        if st in (0, 3, 6): stamp(A, 2 + st // 3)
        breads(2 * st)
        if st > 0:
            mfmas(2 * st - 1)
        breads(2 * st + 1)
        if st + PF < NST: issue_stage(st + PF)
        if st + PF == NST: issue_aux()
        A.e('s_waitcnt lgkmcnt(6)')
        mfmas(2 * st)
        A.e('s_waitcnt lgkmcnt(0)')
    mfmas(17)
    A.e('s_nop 7')
    stamp(A, 5)
    def rowmajor_off(vd):
        A.e('s_lshl_b32 s36, s30, 4')
        A.e(f'v_add_u32 v{vd}, s36, v12')
        A.e(f'v_mul_u32_u24 v{vd}, 1152, v{vd}')
        A.e(f'v_lshl_add_u32 v{vd}, v13, 3, v{vd}')
        A.e('s_mul_i32 s36, s28, 192')
        A.e(f'v_add_u32 v{vd}, s36, v{vd}')
    if mode == 'out':
        if final:
            srd(A, 24, 10, XBYTES)
            rowmajor_off(6)
        else:
            srd(A, 24, 4, XBYTES, out_spec[1])
        A.e('s_mov_b32 s36, 0xffff0000')
        A.e('s_waitcnt vmcnt(0)')
        for t in range(6):
            a = VACC + 4 * t; x = VX + 2 * t
            A.e(f'v_cvt_pk_bf16_f32 v{a}, v{a}, v{a+1}')
            A.e(f'v_cvt_pk_bf16_f32 v{a+1}, v{a+2}, v{a+3}')
            for h in range(2):
                A.e(f'v_lshlrev_b32 v11, 16, v{a+h}')
                A.e(f'v_and_b32 v15, s36, v{a+h}')
                A.e(f'v_lshlrev_b32 v{a+2}, 16, v{x+h}')
                A.e(f'v_and_b32 v{a+3}, s36, v{x+h}')
                A.e(f'v_add_f32 v11, v11, v{a+2}')
                A.e(f'v_add_f32 v15, v15, v{a+3}')
                A.e(f'v_cvt_pk_bf16_f32 v{x+h}, v11, v15')
            if final:
                A.e(f'buffer_store_dwordx2 v[{x}:{x+1}], v6, s[24:27], 0 offen offset:{t*32}')
            else:
                A.e(f'buffer_store_dwordx2 v[{x}:{x+1}], v3, s[24:27], 0 offen offset:{t*512}')
        if not final:
            A.e('s_mov_b32 s36, 0x3f803f80')
            for i in range(4): A.e(f'v_mov_b32 v{VB+i}, 0')
            for j in range(12):
                A.e(f'v_dot2_f32_bf16 v{VB+j%2}, v{VX+j}, s36, v{VB+j%2}')
                A.e(f'v_dot2_f32_bf16 v{VB+2+j%2}, v{VX+j}, v{VX+j}, v{VB+2+j%2}')
            A.e('s_nop 3')
            A.e(f'v_add_f32 v{VB}, v{VB}, v{VB+1}')
            A.e(f'v_add_f32 v{VB+1}, v{VB+2}, v{VB+3}')
            reduce_g(A, [VB, VB + 1], [VB + 2, VB + 3])
            srd(A, 20, 4, 98304, WS_ST)
            A.e('s_lshl_b32 s36, s30, 4')
            A.e('v_add_u32 v3, s36, v12')
            A.e('v_mul_u32_u24 v3, 48, v3')
            A.e('s_lshl_b32 s36, s28, 3')
            A.e('v_cmp_eq_u32 vcc, 0, v13')
            A.e('s_and_saveexec_b64 s[38:39], vcc')
            A.e(f'buffer_store_dwordx2 v[{VB}:{VB+1}], v3, s[20:23], s36 offen')
            A.e('s_mov_b64 exec, -1')
        if 'stamp' in EXP: A.e('s_waitcnt vmcnt(0)')
        stamp(A, 6)
        stamp_flush(A, 8, 4)
        A.e('s_endpgm')
    else:
        srd(A, 24, 4, XBYTES, WS_Q)
        rowmajor_off(3)
        A.e('s_waitcnt vmcnt(0)')
        stats_final(A, VX, 36)
        A.e(f's_mov_b32 s36, 0x{f32bits(QSCALE):x}')
        A.e(f'v_mul_f32 v{VX+1}, s36, v{VX+1}')
        for t in range(6):
            a = VACC + 4 * t
            for i in range(4):
                A.e(f'v_fma_f32 v{a+i}, -v{VX}, v{VCS+4*t+i}, v{a+i}')
                A.e(f'v_mul_f32 v{a+i}, v{VX+1}, v{a+i}')
            A.e(f'v_cvt_pk_bf16_f32 v{a}, v{a}, v{a+1}')
            A.e(f'v_cvt_pk_bf16_f32 v{a+1}, v{a+2}, v{a+3}')
            A.e(f'buffer_store_dwordx2 v[{a}:{a+1}], v3, s[24:27], 0 offen offset:{t*32}')
        if 'stamp' in EXP: A.e('s_waitcnt vmcnt(0)')
        stamp(A, 6)
        stamp_flush(A, 8, 4)
        A.e('s_endpgm')
        A.label(KVPATH)
        srd(A, 16, 4, 2 * 36864, WS_WK)
        A.e('s_sub_u32 s33, s28, 6')
        A.e('s_mul_i32 s37, s33, 128')
        A.e(f's_add_u32 s37, s37, {CS_K}')
        A.e('s_mul_i32 s33, s33, 36864')
        A.e('s_add_u32 s33, s33, s34')
        for r in range(9): wdma(r)
        for ks in range(18): aload(ks)
        stats_cs_loads(2, 37)
        for i in range(8):
            A.e(f'v_mov_b32 v{VACC+i}, 0')
        A.e('s_waitcnt vmcnt(0)')
        A.e('s_barrier')
        for ks in range(18):
            buf = VB + 8 * (ks % 6)
            for t in range(2):
                A.e(f'ds_read_b128 v[{buf+4*t}:{buf+4*t+3}], v4 offset:{(ks*2+t)*1024}')
            if ks % 3 == 2:
                A.e('s_waitcnt lgkmcnt(0)')
                for k2 in range(ks - 2, ks + 1):
                    b2 = VB + 8 * (k2 % 6)
                    for t in range(2):
                        A.e(f'v_mfma_f32_16x16x32_bf16 v[{VACC+4*t}:{VACC+4*t+3}], v[{b2+4*t}:{b2+4*t+3}], v[{VA+4*k2}:{VA+4*k2+3}], v[{VACC+4*t}:{VACC+4*t+3}]')
        A.e('s_nop 7')
        stats_final(A, VX, 36)
        for i in range(8):
            A.e(f'v_fma_f32 v{VACC+i}, -v{VX}, v{VCS+i}, v{VACC+i}')
            A.e(f'v_mul_f32 v{VACC+i}, v{VX+1}, v{VACC+i}')
        srd(A, 24, 4, 163840, WS_KV)
        A.e('s_lshl_b32 s36, s30, 4')
        A.e('v_add_u32 v11, s36, v12')
        A.e('v_lshrrev_b32 v15, 8, v11')
        A.e('v_mul_u32_u24 v15, 20480, v15')
        A.e('v_and_b32 v11, 255, v11')
        VPATH = A.newlabel('vp')
        A.e('s_cmp_eq_u32 s28, 7')
        A.e(f's_cbranch_scc1 {VPATH}')
        a = VACC
        A.e(f'v_cvt_pk_bf16_f32 v{a}, v{a}, v{a+1}')
        A.e(f'v_cvt_pk_bf16_f32 v{a+1}, v{a+2}, v{a+3}')
        A.e('v_lshl_add_u32 v3, v11, 5, v15')
        A.e('v_lshl_add_u32 v3, v13, 3, v3')
        A.e(f'buffer_store_dwordx2 v[{a}:{a+1}], v3, s[24:27], 0 offen')
        A.e(f'v_cvt_pk_bf16_f32 v{a+4}, v{a+4}, v{a+5}')
        A.e(f'v_mov_b32 v{a+5}, 0x3f80')
        A.e('v_lshl_add_u32 v3, v11, 3, v15')
        A.e('v_cmp_eq_u32 vcc, 0, v13')
        A.e('s_mov_b32 s37, 8192')
        A.e('s_and_saveexec_b64 s[38:39], vcc')
        A.e(f'buffer_store_dwordx2 v[{a+4}:{a+5}], v3, s[24:27], s37 offen')
        A.e('s_endpgm')
        A.label(VPATH)
        A.e('v_lshrrev_b32 v3, 4, v11')
        A.e('v_mul_u32_u24 v3, 640, v3')
        A.e('v_add_u32 v3, v3, v15')
        A.e('v_add_u32 v3, 10240, v3')
        A.e('v_bfe_u32 v7, v11, 2, 1')
        A.e('v_lshl_add_u32 v3, v7, 4, v3')
        A.e('v_and_b32 v7, 3, v11')
        A.e('v_lshl_add_u32 v3, v7, 1, v3')
        A.e('v_bfe_u32 v7, v11, 3, 1')
        A.e('v_lshl_add_u32 v3, v7, 3, v3')
        A.e('v_lshl_add_u32 v8, v13, 7, v3')
        a = VACC
        A.e(f'v_cvt_pk_bf16_f32 v{a}, v{a}, v{a+1}')
        A.e(f'v_cvt_pk_bf16_f32 v{a+1}, v{a+2}, v{a+3}')
        A.e(f'v_cvt_pk_bf16_f32 v{a+4}, v{a+4}, v{a+5}')
        A.e(f'v_mov_b32 v{a+5}, 0x3f80')
        A.e(f'buffer_store_short v{a}, v8, s[24:27], 0 offen offset:0')
        A.e(f'buffer_store_short_d16_hi v{a}, v8, s[24:27], 0 offen offset:32')
        A.e(f'buffer_store_short v{a+1}, v8, s[24:27], 0 offen offset:64')
        A.e(f'buffer_store_short_d16_hi v{a+1}, v8, s[24:27], 0 offen offset:96')
        A.e('v_cmp_eq_u32 vcc, 0, v13')
        A.e('s_and_saveexec_b64 s[38:39], vcc')
        A.e(f'buffer_store_short v{a+4}, v3, s[24:27], 0 offen offset:{16*32}')
        A.e(f'buffer_store_short_d16_hi v{a+4}, v3, s[24:27], 0 offen offset:{17*32}')
        A.e(f'buffer_store_short v{a+5}, v3, s[24:27], 0 offen offset:{18*32}')
        A.e(f'buffer_store_short_d16_hi v{a+5}, v3, s[24:27], 0 offen offset:{19*32}')
        A.e('s_endpgm')
    A.label(END)
    A.e('s_endpgm')
    A.lines.append(kdesc(name, 200, 100).rstrip())
    return nwg, 110592


def gather_decode(A, sb, sd, vn, vg, voff, vtmp, sptr_woa, sptr_wob, sptr_wqkv):
    L2 = A.newlabel('gq'); LD = A.newlabel('gd')
    t = sd + 6
    A.e(f's_mov_b32 s{sd+3}, 0x00020000')
    A.e(f's_cmp_ge_u32 s{sb}, 1296')
    A.e(f's_cbranch_scc1 {L2}')
    A.e(f's_cmp_ge_u32 s{sb}, 648')
    A.e(f's_cselect_b32 s{sd}, s{sptr_wob}, s{sptr_woa}')
    A.e(f's_cselect_b32 s{sd+1}, s{sptr_wob+1}, s{sptr_woa+1}')
    A.e(f's_cselect_b32 s{t}, 648, 0')
    A.e(f's_mov_b32 s{sd+2}, {D*D*2}')
    A.e(f's_lshl_b32 s{sd+5}, s{sb}, 10')
    A.e(f's_add_u32 s{sd+5}, s{sd+5}, {WS_WOA}')
    A.e(f's_sub_u32 s{t}, s{sb}, s{t}')
    udiv(A, t + 1, t, 108, 648)
    A.e(f's_mul_i32 s{t+2}, s{t+1}, 108')
    A.e(f's_sub_u32 s{t+2}, s{t}, s{t+2}')
    udiv(A, t + 3, t + 2, 6, 108)
    A.e(f's_mul_i32 s{t+4}, s{t+3}, 6')
    A.e(f's_sub_u32 s{t+4}, s{t+2}, s{t+4}')
    A.e(f's_mul_i32 s{t+1}, s{t+1}, 96')
    A.e(f's_lshl_b32 s{t+4}, s{t+4}, 4')
    A.e(f's_add_u32 s{t+1}, s{t+1}, s{t+4}')
    A.e(f'v_add_u32 v{voff}, s{t+1}, v{vn}')
    A.e(f'v_lshlrev_b32 v{voff}, 1, v{voff}')
    A.e(f's_movk_i32 s{sd+4}, 1152')
    A.e(f's_branch {LD}')
    A.label(L2)
    A.e(f's_mov_b32 s{sd}, s{sptr_wqkv}')
    A.e(f's_mov_b32 s{sd+1}, s{sptr_wqkv+1}')
    A.e(f's_mov_b32 s{sd+2}, {D*3*D*2}')
    A.e(f's_sub_u32 s{t}, s{sb}, 1296')
    A.e(f's_lshl_b32 s{sd+5}, s{t}, 10')
    A.e(f's_add_u32 s{sd+5}, s{sd+5}, {WS_WQKV}')
    A.e(f's_cmp_ge_u32 s{sb}, 3312')
    A.e(f's_cselect_b32 s{sd+5}, 0x7f000000, s{sd+5}')
    A.e(f's_cselect_b32 s{t}, 0, s{t}')
    A.e(f's_cselect_b32 s{t+5}, 0, 108')
    udiv(A, t + 1, t, 126, 2016)
    A.e(f's_mul_i32 s{t+2}, s{t+1}, 126')
    A.e(f's_sub_u32 s{t+2}, s{t}, s{t+2}')
    udiv(A, t + 3, t + 2, 7, 126)
    A.e(f's_mul_i32 s{t+4}, s{t+3}, 7')
    A.e(f's_sub_u32 s{t+4}, s{t+2}, s{t+4}')
    A.e(f's_lshl_b32 s{t+4}, s{t+4}, 4')
    A.e(f'v_add_u32 v{voff}, s{t+4}, v{vn}')
    A.e(f'v_mul_u32_u24 v{vtmp}, 57, v{voff}')
    A.e(f'v_lshrrev_b32 v{vtmp}, 11, v{vtmp}')
    A.e(f'v_mul_u32_u24 v{vtmp}, 540, v{vtmp}')
    A.e(f'v_add_u32 v{vtmp}, v{vtmp}, v{voff}')
    A.e(f's_mul_i32 s{t+1}, s{t+1}, 36')
    A.e(f'v_add_u32 v{vtmp}, s{t+1}, v{vtmp}')
    A.e(f'v_cmp_gt_u32 vcc, s{t+5}, v{voff}')
    A.e(f'v_lshlrev_b32 v{voff}, 1, v{vtmp}')
    A.e(f'v_mov_b32 v{vtmp}, 0x7f000000')
    A.e(f'v_cndmask_b32 v{voff}, v{vtmp}, v{voff}, vcc')
    A.e(f's_movk_i32 s{sd+4}, 3456')
    A.label(LD)
    A.e(f's_lshl_b32 s{t+3}, s{t+3}, 5')
    A.e(f'v_lshl_add_u32 v{vtmp}, v{vg}, 3, s{t+3}')
    A.e(f'v_mul_lo_u32 v{vtmp}, v{vtmp}, s{sd+4}')
    A.e(f'v_add_u32 v{voff}, v{voff}, v{vtmp}')
```

```python
from asmlib import *
from gen import *

def attn(A, name, gather=False):
    END = A.newlabel('end')
    A.lines.append(khead(name).rstrip())
    QA, QB = 8, 12
    KLO = [16, 20]; KHI = [24, 28]
    VV = [32, 40]
    SS = [48, 64]
    P = 80
    O = 88
    aK, aH, aV = 104, 105, 106
    nK, nH, nV = 107, 108, 109
    cK, cH, cV = 110, 111, 112
    T = 113
    A.e('s_cmp_ge_u32 s2, 256')
    A.e(f's_cbranch_scc1 {END}')
    stamp(A, 0)
    A.e(f's_load_dwordx2 s[4:5], s[0:1], {KA["ws"]}')
    if gather:
        A.e(f's_load_dwordx2 s[36:37], s[0:1], {KA["A_wo"]}')
        A.e(f's_load_dwordx4 s[40:43], s[0:1], {KA["B_wqkv"]}')
    A.e('v_and_b32 v1, 63, v0')
    A.e('v_lshrrev_b32 v2, 6, v0')
    A.e('s_nop 0')
    A.e('v_readfirstlane_b32 s20, v2')
    A.e('v_and_b32 v2, 31, v1')
    A.e('v_lshrrev_b32 v3, 5, v1')
    A.e('s_lshl_b32 s21, s2, 3')
    A.e('s_add_u32 s21, s21, s20')
    A.e('s_mul_i32 s22, s21, 1152')
    A.e('v_mul_u32_u24 v4, 36, v2')
    A.e('v_add_u32 v4, s22, v4')
    A.e('v_lshl_add_u32 v5, v3, 4, v4')
    A.e('v_lshlrev_b32 v6, 4, v1')
    A.e('s_waitcnt lgkmcnt(0)')
    srd(A, 8, 4, XBYTES, WS_Q)
    srd(A, 12, 4, 163840, WS_KV)
    srd(A, 16, 4, XBYTES, WS_O)
    A.e(f'buffer_load_dwordx4 v[{QA}:{QA+3}], v5, s[8:11], 0 offen')
    A.e(f'buffer_load_dword v{QB}, v4, s[8:11], 0 offen offset:32')
    A.e('s_lshl_b32 s23, s20, 10')
    for n in range(20):
        A.e(f's_add_u32 s24, s23, {n*8192}')
        A.e('s_mov_b32 m0, s24')
        A.e('s_nop 0')
        A.e('buffer_load_dwordx4 v6, s[12:15], s24 offen lds')
    GX = 16 if gather else 0
    if gather:
        A.e('v_and_b32 v113, 15, v1')
        A.e('v_lshrrev_b32 v114, 4, v1')
        for bi in range(2):
            A.e(f's_add_u32 s44, s21, {2048*bi}')
            sd = 74 if bi == 0 else 44 + 4
            sd = (76, 88)[bi]
            gather_decode(A, 44, sd, 113, 114, 115, 116, 36, 42, 40)
            for e in range(8):
                A.e(f's_mul_i32 s45, s{sd+4}, {e}')
                A.e(f'buffer_load_ushort v{120+8*bi+e}, v115, s[{sd}:{sd+3}], s45 offen')
    GX = 16 if gather else 0
    if gather:
        A.e('v_and_b32 v113, 15, v1')
        A.e('v_lshrrev_b32 v114, 4, v1')
        for bi in range(2):
            A.e(f's_add_u32 s44, s21, {2048*bi}')
            sd = 74 if bi == 0 else 44 + 4
            sd = (76, 88)[bi]
            gather_decode(A, 44, sd, 113, 114, 115, 116, 36, 42, 40)
            for e in range(8):
                A.e(f's_mul_i32 s45, s{sd+4}, {e}')
                A.e(f'buffer_load_ushort v{120+8*bi+e}, v115, s[{sd}:{sd+3}], s45 offen')
    A.e(f'v_lshlrev_b32 v{cK}, 5, v2')
    A.e(f'v_lshl_add_u32 v{cK}, v3, 4, v{cK}')
    A.e(f'v_add_u32 v{cV}, 10240, v{cK}')
    A.e(f'v_lshlrev_b32 v{cH}, 3, v2')
    A.e(f'v_add_u32 v{cH}, 8192, v{cH}')
    for r in (KHI[0] + 2, KHI[0] + 3, KHI[1] + 2, KHI[1] + 3, QB + 1, QB + 2, QB + 3):
        A.e(f'v_mov_b32 v{r}, 0')
    A.e('v_cmp_eq_u32 s[26:27], 0, v3')
    A.e('s_mov_b32 s28, 1')
    stamp(A, 1)
    A.e(f's_waitcnt vmcnt({17+GX})')
    A.e(f'v_cndmask_b32 v{QB}, 0, v{QB}, s[26:27]')
    A.e('s_barrier')
    stamp(A, 2)
    A.e(f'ds_read_b128 v[{KLO[0]}:{KLO[0]+3}], v{cK}')
    A.e(f'ds_read_b64 v[{KHI[0]}:{KHI[0]+1}], v{cH}')
    A.e('s_waitcnt lgkmcnt(0)')
    s = SS[0]
    A.e(f'v_mfma_f32_32x32x16_bf16 v[{s}:{s+15}], v[{KLO[0]}:{KLO[0]+3}], v[{QA}:{QA+3}], 0')
    A.e(f'v_mfma_f32_32x32x16_bf16 v[{s}:{s+15}], v[{KHI[0]}:{KHI[0]+3}], v[{QB}:{QB+3}], v[{s}:{s+15}]')
    A.e('s_nop 15')
    A.e(f'v_max3_f32 v{T}, v{s}, v{s+1}, v{s+2}')
    for i in range(3, 15, 2):
        A.e(f'v_max3_f32 v{T}, v{T}, v{s+i}, v{s+i+1}')
    A.e(f'v_max_f32 v{T}, v{T}, v{s+15}')
    SETM = A.newlabel('setm')
    A.label(SETM)
    A.e(f'v_mov_b32 v{T+1}, v{T}')
    A.e('s_nop 1')
    A.e(f'v_permlane32_swap_b32 v{T}, v{T+1}')
    A.e(f'v_max_f32 v{T}, v{T}, v{T+1}')
    A.e(f'v_cvt_pk_bf16_f32 v{T}, v{T}, v{T}')
    A.e(f'v_and_b32 v{T}, 0xffff, v{T}')
    A.e(f'v_xor_b32 v{T}, 0x8000, v{T}')
    A.e(f'v_cndmask_b32 v{QB+1}, 0, v{T}, s[26:27]')
    for i in range(16):
        A.e(f'v_mov_b32 v{O+i}, 0')
    for i in range(4):
        A.e(f'v_mov_b32 v{P+4+i}, 0')
        A.e(f'v_mov_b32 v{VV[1]+4+i}, 0')
    for c_, a_, n_ in ((cK, aK, nK), (cH, aH, nH), (cV, aV, nV)):
        A.e(f'v_mov_b32 v{a_}, v{c_}')
        A.e(f'v_add_u32 v{n_}, 20480, v{c_}')
    A.e(f'ds_read_b128 v[{KLO[0]}:{KLO[0]+3}], v{cK}')
    A.e(f'ds_read_b64 v[{KHI[0]}:{KHI[0]+1}], v{cH}')
    A.e(f'ds_read_b128 v[{KLO[1]}:{KLO[1]+3}], v{cK} offset:1024')
    A.e(f'ds_read_b64 v[{KHI[1]}:{KHI[1]+1}], v{cH} offset:256')
    A.e(f'ds_read_b128 v[{VV[0]}:{VV[0]+3}], v{cV}')
    A.e(f'ds_read_b128 v[{VV[0]+4}:{VV[0]+7}], v{cV} offset:640')
    A.e('s_mov_b32 s29, 0')
    A.e('s_waitcnt lgkmcnt(4)')
    A.e(f'v_mfma_f32_32x32x16_bf16 v[{s}:{s+15}], v[{KLO[0]}:{KLO[0]+3}], v[{QA}:{QA+3}], 0')
    A.e(f'v_mfma_f32_32x32x16_bf16 v[{s}:{s+15}], v[{KHI[0]}:{KHI[0]+3}], v[{QB}:{QB+3}], v[{s}:{s+15}]')
    A.e('s_nop 7')
    stamp(A, 3)
    LOOP = A.newlabel('loop')
    A.label(LOOP)
    for j in range(8):
        p = j % 2
        if j == 6:
            SK = A.newlabel('nosync'); L5 = A.newlabel('l5'); L0 = A.newlabel('l0'); LB = A.newlabel('lb')
            A.e('s_cmp_eq_u32 s28, 0')
            A.e(f's_cbranch_scc1 {SK}')
            A.e('s_cmp_eq_u32 s29, 1')
            A.e(f's_cbranch_scc1 {L5}')
            A.e('s_cmp_eq_u32 s29, 3')
            A.e(f's_cbranch_scc1 {L0}')
            A.e('s_cmp_lg_u32 s29, 0')
            A.e(f's_cbranch_scc1 {SK}')
            A.e(f's_waitcnt vmcnt({15+GX})')
            A.e(f's_branch {LB}')
            A.label(L5)
            A.e(f's_waitcnt vmcnt({10+GX})')
            A.e(f's_branch {LB}')
            A.label(L0)
            A.e(f's_waitcnt vmcnt({GX})')
            A.label(LB)
            A.e('s_barrier')
            A.label(SK)
        j2 = j + 2
        ak, ah = (aK, aH) if j2 < 8 else (nK, nH)
        A.e(f'ds_read_b128 v[{KLO[p]}:{KLO[p]+3}], v{ak} offset:{(j2%8)*1024}')
        A.e(f'ds_read_b64 v[{KHI[p]}:{KHI[p]+1}], v{ah} offset:{(j2%8)*256}')
        A.e(f'v_mfma_f32_32x32x16_bf16 v[{O}:{O+15}], v[{VV[1-p]+4}:{VV[1-p]+7}], v[{P+4}:{P+7}], v[{O}:{O+15}]')
        j1 = j + 1
        av = aV if j1 < 8 else nV
        A.e(f'ds_read_b128 v[{VV[1-p]}:{VV[1-p]+3}], v{av} offset:{(j1%8)*1280}')
        A.e(f'ds_read_b128 v[{VV[1-p]+4}:{VV[1-p]+7}], v{av} offset:{(j1%8)*1280+640}')
        A.e('s_waitcnt lgkmcnt(4)')
        sn = SS[1 - p]; sc = SS[p]
        A.e(f'v_mfma_f32_32x32x16_bf16 v[{sn}:{sn+15}], v[{KLO[1-p]}:{KLO[1-p]+3}], v[{QA}:{QA+3}], 0')
        for r in range(0, 4): A.e(f'v_exp_f32 v{sc+r}, v{sc+r}')
        A.e(f'v_mfma_f32_32x32x16_bf16 v[{sn}:{sn+15}], v[{KHI[1-p]}:{KHI[1-p]+3}], v[{QB}:{QB+3}], v[{sn}:{sn+15}]')
        for r in range(4, 8): A.e(f'v_exp_f32 v{sc+r}, v{sc+r}')
        for r in range(0, 4): A.e(f'v_cvt_pk_bf16_f32 v{P+r}, v{sc+2*r}, v{sc+2*r+1}')
        for r in range(8, 12): A.e(f'v_exp_f32 v{sc+r}, v{sc+r}')
        A.e(f'v_mfma_f32_32x32x16_bf16 v[{O}:{O+15}], v[{VV[p]}:{VV[p]+3}], v[{P}:{P+3}], v[{O}:{O+15}]')
        for r in range(12, 16): A.e(f'v_exp_f32 v{sc+r}, v{sc+r}')
        for r in range(4, 8): A.e(f'v_cvt_pk_bf16_f32 v{P+r}, v{sc+2*r}, v{sc+2*r+1}')
    A.e('s_add_u32 s29, s29, 1')
    A.e('s_add_u32 s30, s29, 1')
    A.e('s_and_b32 s30, s30, 7')
    A.e('s_mul_i32 s30, s30, 20480')
    for c_, a_, n_ in ((cK, aK, nK), (cH, aH, nH), (cV, aV, nV)):
        A.e(f'v_mov_b32 v{a_}, v{n_}')
        A.e(f'v_add_u32 v{n_}, s30, v{c_}')
    A.e('s_cmp_lt_u32 s29, 8')
    A.e(f's_cbranch_scc1 {LOOP}')
    A.e(f'v_mfma_f32_32x32x16_bf16 v[{O}:{O+15}], v[{VV[1]+4}:{VV[1]+7}], v[{P+4}:{P+7}], v[{O}:{O+15}]')
    A.e('s_waitcnt lgkmcnt(0)')
    A.e('s_nop 15')
    A.e('s_nop 3')
    stamp(A, 4)
    EPI = A.newlabel('epi')
    A.e('s_movk_i32 s31, 0x207')
    A.e('s_mov_b64 s[32:33], 0')
    for r in range(11):
        A.e(f'v_cmp_class_f32 vcc, v{O+r}, s31' if False else f'v_cmp_class_f32 s[34:35], v{O+r}, s31')
        A.e('s_or_b64 s[32:33], s[32:33], s[34:35]')
    A.e('s_cmp_eq_u64 s[32:33], 0')
    A.e(f's_cbranch_scc1 {EPI}')
    A.e('s_cmp_eq_u32 s28, 0')
    A.e(f's_cbranch_scc1 {EPI}')
    A.e('s_mov_b32 s28, 0')
    A.e('s_waitcnt vmcnt(0)')
    A.e(f'v_mov_b32 v{QB+1}, 0')
    A.e(f'v_mov_b32 v{T}, 0xff800000')
    A.e(f'v_mov_b32 v{aK}, v{cK}')
    A.e(f'v_mov_b32 v{aH}, v{cH}')
    A.e('s_mov_b32 s29, 0')
    FL = A.newlabel('fl')
    A.label(FL)
    for j in range(8):
        A.e(f'ds_read_b128 v[{KLO[0]}:{KLO[0]+3}], v{aK} offset:{j*1024}')
        A.e(f'ds_read_b64 v[{KHI[0]}:{KHI[0]+1}], v{aH} offset:{j*256}')
        A.e('s_waitcnt lgkmcnt(0)')
        A.e(f'v_mfma_f32_32x32x16_bf16 v[{s}:{s+15}], v[{KLO[0]}:{KLO[0]+3}], v[{QA}:{QA+3}], 0')
        A.e(f'v_mfma_f32_32x32x16_bf16 v[{s}:{s+15}], v[{KHI[0]}:{KHI[0]+3}], v[{QB}:{QB+3}], v[{s}:{s+15}]')
        A.e('s_nop 15')
        for i in range(0, 16, 2):
            A.e(f'v_max3_f32 v{T}, v{T}, v{s+i}, v{s+i+1}')
    A.e(f'v_add_u32 v{aK}, 20480, v{aK}')
    A.e(f'v_add_u32 v{aH}, 20480, v{aH}')
    A.e('s_add_u32 s29, s29, 1')
    A.e('s_cmp_lt_u32 s29, 8')
    A.e(f's_cbranch_scc1 {FL}')
    A.e(f's_branch {SETM}')
    A.label(EPI)
    A.e(f'v_mov_b32 v{T}, v{O+10}')
    A.e(f'v_mov_b32 v{T+1}, v{O+10}')
    A.e('s_nop 1')
    A.e(f'v_permlane32_swap_b32 v{T}, v{T+1}')
    A.e(f'v_rcp_f32 v{T}, v{T}')
    A.e('s_nop 0')
    for r in range(10):
        A.e(f'v_mul_f32 v{O+r}, v{O+r}, v{T}')
    for r in range(5):
        A.e(f'v_cvt_pk_bf16_f32 v{P+r}, v{O+2*r}, v{O+2*r+1}')
    A.e('s_lshr_b32 s22, s21, 4')
    A.e('s_mul_i32 s22, s22, 18432')
    A.e('s_and_b32 s23, s21, 15')
    A.e('s_lshl_b32 s23, s23, 4')
    A.e('s_add_u32 s22, s22, s23')
    A.e('v_mul_u32_u24 v4, 18, v2')
    A.e('v_lshl_add_u32 v4, v3, 2, v4')
    for j, dk in enumerate((0, 2, 8, 10, 16)):
        A.e(f'v_add_u32 v5, {dk}, v4')
        A.e('v_lshrrev_b32 v6, 3, v5')
        A.e('v_and_b32 v5, 7, v5')
        A.e('v_lshlrev_b32 v5, 1, v5')
        A.e('v_lshl_add_u32 v5, v6, 8, v5')
        if j == 4:
            A.e('s_and_b64 exec, exec, s[26:27]')
        A.e(f'buffer_store_dword v{P+j}, v5, s[16:19], s22 offen')
    A.e('s_mov_b64 exec, -1')
    if gather:
        A.e('s_waitcnt vmcnt(5)')
        srd(A, 8, 4, 0x1400000)
        A.e('v_lshlrev_b32 v6, 4, v1')
        for bi in range(2):
            sd = (76, 88)[bi]
            for e in range(4):
                A.e(f'v_lshl_or_b32 v{48+4*bi+e}, v{121+8*bi+2*e}, 16, v{120+8*bi+2*e}')
            A.e(f'buffer_store_dwordx4 v[{48+4*bi}:{51+4*bi}], v6, s[8:11], s{sd+5} offen')
    if 'stamp' in EXP: A.e('s_waitcnt vmcnt(0)')
    stamp(A, 5)
    stamp_flush(A, 8, 4)
    A.label(END)
    A.e('s_endpgm')
    A.lines.append(kdesc(name, 136 if gather else 120, 100).rstrip())
    return 256, 163840
```

```python
from asmlib import *
from gen import *

def k4(A, name, a_off):
    END = A.newlabel('end')
    A.lines.append(khead(name).rstrip())
    VA, VB, VACC = 16, 88, 120
    VT = 88
    RS = 232
    A.e('s_cmp_ge_u32 s2, 256')
    A.e(f's_cbranch_scc1 {END}')
    stamp(A, 0)
    A.e(f's_load_dwordx2 s[8:9], s[0:1], {KA["ws"]}')
    A.e('s_lshr_b32 s3, s2, 4')
    A.e('s_and_b32 s28, s2, 15')
    A.e('v_and_b32 v1, 63, v0')
    A.e('v_lshrrev_b32 v11, 6, v0')
    A.e('s_nop 0')
    A.e('v_readfirstlane_b32 s29, v11')
    A.e('v_and_b32 v12, 15, v1')
    A.e('v_lshrrev_b32 v13, 4, v1')
    A.e('v_lshlrev_b32 v4, 4, v1')
    A.e('s_add_u32 s30, s29, 1')
    A.e('s_cmp_eq_u32 s29, 8')
    A.e('s_cselect_b32 s30, 0, s30')
    A.e('s_lshl_b32 s31, s3, 3')
    A.e('s_add_u32 s31, s31, s30')
    A.e('s_sub_u32 s31, s31, 1')
    A.e('s_mul_i32 s31, s31, 18432')
    A.e('v_add_u32 v2, s31, v4')
    for j in range(1, 5):
        A.e(f's_mov_b32 s{40+j}, {j*4096}')
    A.e('s_mov_b32 s40, 0')
    A.e('s_waitcnt lgkmcnt(0)')
    srd(A, 12, 8, XBYTES, a_off)
    srd(A, 16, 8, 16 * 129024, WS_WQKV)
    srd(A, 20, 8, XBYTES, WS_O)
    A.e('s_mul_i32 s33, s28, 129024')
    A.e('s_lshl_b32 s34, s29, 10')
    A.e('s_add_u32 s33, s33, s34')
    def aload(ks):
        A.e(f'buffer_load_dwordx4 v[{VA+4*ks}:{VA+4*ks+3}], v2, s[12:15], s{40+ks//4} offen offset:{(ks%4)*1024}')
    def wdma(r):
        A.e(f's_add_u32 m0, s34, {r*9216}')
        A.e(f's_add_u32 s35, s33, {r*9216}')
        A.e('buffer_load_dwordx4 v4, s[16:19], s35 offen lds')
    for i in range(72):
        A.e(f'v_mov_b32 v{VA+i}, 0x3f803f80')
    A.e('v_cmp_ne_u32 s[46:47], 0, v12')
    A.e('s_cmp_eq_u32 s29, 8')
    A.e('s_cselect_b64 s[46:47], s[46:47], -1')
    vm = VM()
    NST, PF = 9, 3
    rdone = [0]
    def issue_stage(st):
        A.e('s_mov_b64 exec, s[46:47]')
        for ks in (2 * st, 2 * st + 1):
            aload(ks); vm.add(st)
        A.e('s_mov_b64 exec, -1')
        rneed = min(14, -(-(14 * (st + 1)) // 9))
        for r in range(rdone[0], rneed):
            wdma(r); vm.add(st)
        rdone[0] = rneed
    VS = 148
    def issue_aux():
        srd(A, 24, 8, 98304, WS_ST)
        A.e('s_lshl_b32 s36, s3, 3')
        A.e('s_add_u32 s36, s36, s30')
        A.e('s_sub_u32 s36, s36, 1')
        A.e('s_lshl_b32 s36, s36, 4')
        A.e('v_add_u32 v3, s36, v12')
        A.e('v_mul_i32_i24 v3, 48, v3')
        for i in range(3):
            A.e(f'buffer_load_dwordx4 v[{VS+4*i}:{VS+4*i+3}], v3, s[24:27], 0 offen offset:{16*i}'); vm.add('aux')
    for st in range(PF): issue_stage(st)
    A.e('v_add_u32 v5, 64512, v4')
    for i in range(28):
        A.e(f'v_mov_b32 v{VACC+i}, 0')
    stamp(A, 1)
    units = [(ks, hf) for ks in range(18) for hf in range(2)]
    def tiles(hf): return range(0, 4) if hf == 0 else range(4, 7)
    def reads(u):
        ks, hf = units[u]
        buf = VB + 16 * (u % 2)
        for i, t in enumerate(tiles(hf)):
            A.e(f'ds_read_b128 v[{buf+4*i}:{buf+4*i+3}], v{4 if ks < 9 else 5} offset:{((ks % 9) * 7 + t) * 1024}')
    def mf(u):
        ks, hf = units[u]
        buf = VB + 16 * (u % 2)
        for i, t in enumerate(tiles(hf)):
            a = VACC + 4 * t
            A.e(f'v_mfma_f32_16x16x32_bf16 v[{a}:{a+3}], v[{buf+4*i}:{buf+4*i+3}], v[{VA+4*ks}:{VA+4*ks+3}], v[{a}:{a+3}]')
    for st in range(NST):
        u0 = 4 * st
        vm.wait_for(A, lambda t: t == st)
        A.e('s_barrier')
        if st < 8: stamp(A, 8 + st)
        reads(u0)
        if st > 0: mf(u0 - 1)
        reads(u0 + 1)
        if st + PF < NST: issue_stage(st + PF)
        if st + PF == NST: issue_aux()
        A.e('s_waitcnt lgkmcnt(3)')
        mf(u0)
        reads(u0 + 2)
        A.e('s_waitcnt lgkmcnt(4)')
        mf(u0 + 1)
        reads(u0 + 3)
        A.e('s_waitcnt lgkmcnt(3)')
        mf(u0 + 2)
        A.e('s_waitcnt lgkmcnt(0)')
    mf(35)
    A.e('s_nop 7')
    stamp(A, 4)
    NOCS = A.newlabel('nocs')
    A.e('s_cmp_lg_u32 s29, 8')
    A.e(f's_cbranch_scc1 {NOCS}')
    A.e('v_lshlrev_b32 v3, 4, v13')
    A.e('v_add_u32 v3, 129024, v3')
    A.e('v_cmp_eq_u32 vcc, 0, v12')
    A.e('s_and_saveexec_b64 s[38:39], vcc')
    for t in range(7):
        A.e(f'ds_write_b128 v3, v[{VACC+4*t}:{VACC+4*t+3}] offset:{64*t}')
    A.e('s_mov_b64 exec, -1')
    A.e('s_waitcnt lgkmcnt(0)')
    A.label(NOCS)
    A.e('s_barrier')
    A.e('v_lshlrev_b32 v3, 4, v13')
    A.e('v_add_u32 v3, 129024, v3')
    for t in range(7):
        A.e(f'ds_read_b128 v[{32+4*t}:{35+4*t}], v3 offset:{64*t}')
    A.e('s_waitcnt vmcnt(0)')
    stats_final(A, VS, 36)
    A.e('s_waitcnt lgkmcnt(0)')
    for i in range(28):
        A.e(f'v_fma_f32 v{VACC+i}, -v{VS}, v{32+i}, v{VACC+i}')
        A.e(f'v_mul_f32 v{VACC+i}, v{VS+1}, v{VACC+i}')
    A.e('s_lshl_b32 s32, s30, 4')
    A.e('v_add_u32 v5, s32, v12')
    A.e(f'v_mul_u32_u24 v5, {RS}, v5')
    A.e('v_lshl_add_u32 v5, v13, 3, v5')
    for t in range(7):
        a = VACC + 4 * t
        A.e(f'v_cvt_pk_bf16_f32 v{a}, v{a}, v{a+1}')
        A.e(f'v_cvt_pk_bf16_f32 v{a+1}, v{a+2}, v{a+3}')
        A.e(f'ds_write_b64 v5, v[{a}:{a+1}] offset:{t*32}')
    A.e('s_waitcnt lgkmcnt(0)')
    A.e('s_barrier')
    A.e('s_cmp_eq_u32 s29, 8')
    A.e(f's_cbranch_scc1 {END}')
    stamp(A, 5)
    Q = 16; K = 32; Vv = 72
    OACC = 112
    LG = 132
    A.e('v_and_b32 v2, 1, v1')
    A.e('v_bfe_u32 v3, v1, 1, 1')
    A.e('v_lshrrev_b32 v4, 2, v1')
    A.e('s_lshl_b32 s32, s29, 4')
    A.e('v_add_u32 v4, s32, v4')
    A.e('v_add_u32 v5, 16, v4')
    A.e(f'v_mul_u32_u24 v5, {RS}, v5')
    A.e('v_mul_u32_u24 v6, 36, v3')
    A.e('v_add_u32 v5, v5, v6')
    A.e(f'v_mul_u32_u24 v6, {8*RS}, v2')
    A.e('v_sub_u32 v6, v5, v6')
    for ww in range(4):
        A.e(f'v_subrev_u32 v{8+ww}, {ww*2*RS}, v6')
    def rd9(dst, base, dwo):
        for i in range(4):
            A.e(f'ds_read2_b32 v[{dst+2*i}:{dst+2*i+1}], v{base} offset0:{dwo+2*i} offset1:{dwo+2*i+1}')
        A.e(f'ds_read_b32 v{dst+8}, v{base} offset:{(dwo+8)*4}')
    rd9(Q, 5, 0)
    for ww in range(4):
        rd9(K + 10 * ww, 8 + ww, 18)
    A.e('s_waitcnt lgkmcnt(0)')
    for ww in range(4):
        rd9(Vv + 10 * ww, 8 + ww, 36)
    for ww in range(4):
        A.e(f'v_mov_b32 v{LG+ww}, 0')
    for i in range(9):
        for ww in range(4):
            A.e(f'v_dot2_f32_bf16 v{LG+ww}, v{Q+i}, v{K+10*ww+i}, v{LG+ww}')
    A.e('s_nop 3')
    A.e(f's_mov_b32 s35, 0x{f32bits(DH ** -0.5):x}')
    A.e('s_lshl_b32 s36, s3, 7')
    A.e('v_add_u32 v7, s36, v4')
    A.e('v_lshlrev_b32 v13, 3, v2')
    A.e(f'v_mov_b32 v14, 0x{f32bits(-1e9):x}')
    for ww in range(4):
        l = LG + ww
        A.e(f'v_cvt_pk_bf16_f32 v{l}, v{l}, v{l}')
        A.e(f'v_lshlrev_b32 v{l}, 16, v{l}')
        A.e(f'v_mul_f32 v{l}, s35, v{l}')
        A.e(f'v_cvt_pk_bf16_f32 v{l}, v{l}, v{l}')
        A.e(f'v_lshlrev_b32 v{l}, 16, v{l}')
        A.e(f'v_add_u32 v12, {2*ww}, v13')
        A.e('v_cmp_ge_u32 vcc, v7, v12')
        A.e('s_nop 1')
        A.e(f'v_cndmask_b32 v{l}, v14, v{l}, vcc')
    A.e(f'v_max3_f32 v12, v{LG}, v{LG+1}, v{LG+2}')
    A.e(f'v_max_f32 v12, v12, v{LG+3}')
    A.e('s_nop 1')
    A.e('v_max_f32_dpp v12, v12, v12 quad_perm:[1,0,3,2] row_mask:0xf bank_mask:0xf')
    A.e(f's_mov_b32 s35, 0x{f32bits(math.log2(math.e)):x}')
    for ww in range(4):
        l = LG + ww
        A.e(f'v_sub_f32 v{l}, v{l}, v12')
        A.e(f'v_mul_f32 v{l}, s35, v{l}')
        A.e(f'v_exp_f32 v{l}, v{l}')
    A.e('s_nop 0')
    A.e(f'v_add_f32 v13, v{LG}, v{LG+1}')
    A.e(f'v_add_f32 v14, v{LG+2}, v{LG+3}')
    A.e('v_add_f32 v13, v13, v14')
    A.e('s_nop 1')
    A.e('v_add_f32_dpp v13, v13, v13 quad_perm:[1,0,3,2] row_mask:0xf bank_mask:0xf')
    A.e('v_rcp_f32 v13, v13')
    A.e('s_nop 0')
    for ww in range(4):
        l = LG + ww
        A.e(f'v_mul_f32 v{l}, v{l}, v13')
        A.e(f'v_cvt_pk_bf16_f32 v{l}, v{l}, v{l}')
        A.e(f'v_lshlrev_b32 v{l}, 16, v{l}')
    A.e('s_mov_b32 s35, 0xffff0000')
    A.e('s_waitcnt lgkmcnt(0)')
    for ww in range(4):
        for i in range(9):
            v = Vv + 10 * ww + i
            A.e(f'v_lshlrev_b32 v12, 16, v{v}')
            A.e(f'v_and_b32 v13, s35, v{v}')
            if ww == 0:
                A.e(f'v_mul_f32 v{OACC+2*i}, v12, v{LG}')
                A.e(f'v_mul_f32 v{OACC+2*i+1}, v13, v{LG}')
            else:
                A.e(f'v_fmac_f32 v{OACC+2*i}, v12, v{LG+ww}')
                A.e(f'v_fmac_f32 v{OACC+2*i+1}, v13, v{LG+ww}')
    A.e('s_nop 1')
    for i in range(18):
        A.e(f'v_add_f32_dpp v{OACC+i}, v{OACC+i}, v{OACC+i} quad_perm:[1,0,3,2] row_mask:0xf bank_mask:0xf')
    for i in range(9):
        A.e(f'v_cvt_pk_bf16_f32 v{Q+i}, v{OACC+2*i}, v{OACC+2*i+1}')
    A.e('v_lshrrev_b32 v12, 4, v7')
    A.e('v_mul_u32_u24 v12, 18432, v12')
    A.e('v_and_b32 v13, 15, v7')
    A.e('v_lshl_add_u32 v12, v13, 4, v12')
    A.e('s_mul_i32 s33, s28, 36')
    A.e('v_mul_u32_u24 v13, 18, v3')
    A.e('v_add_u32 v13, s33, v13')
    A.e('v_cmp_eq_u32 vcc, 0, v2')
    A.e('s_and_saveexec_b64 s[38:39], vcc')
    for i in range(9):
        A.e(f'v_add_u32 v14, {2*i}, v13')
        A.e('v_lshrrev_b32 v15, 3, v14')
        A.e('v_and_b32 v14, 7, v14')
        A.e('v_lshl_add_u32 v14, v14, 1, v12')
        A.e('v_lshl_add_u32 v14, v15, 8, v14')
        A.e(f'buffer_store_dword v{Q+i}, v14, s[20:23], 0 offen')
    A.e('s_mov_b64 exec, -1')
    stamp(A, 6)
    if 'stamp' in EXP: A.e('s_waitcnt vmcnt(0)')
    stamp(A, 7)
    stamp_flush(A, 16, 8)
    A.label(END)
    A.e('s_endpgm')
    A.lines.append(kdesc(name, 160, 100).rstrip())
    return 256, 129536
```

```python
import sys
from asmlib import *
from gen import *
from gen_attn import attn
from gen_k4 import k4
HDR = open('interleave_layers__grouped_kv_mqa__sliding_local_dilated__prompt.s.ref').read().split('; Override launch')[0]
def build(path):
    A = Asm()
    L = []
    def add(name, r, blk): L.append((name, r[0], blk, r[1]))
    add('prep_kernel', prep(A, 'prep_kernel'), 256)
    add('qkva1_kernel', gemm96(A, 'qkva1_kernel', 'qkv', WS_XF, WS_WQ), 256)
    add('attng_kernel', attn(A, 'attng_kernel', True), 512)
    add('outa1_kernel', gemm96(A, 'outa1_kernel', 'out', WS_O, WS_WOA, WS_XF, ('w', WS_XA)), 256)
    add('qkvb1_kernel', k4(A, 'qkvb1_kernel', WS_XA), 576)
    add('outb1_kernel', gemm96(A, 'outb1_kernel', 'out', WS_O, WS_WOB, WS_XA, ('w', WS_XB)), 256)
    add('qkva2_kernel', gemm96(A, 'qkva2_kernel', 'qkv', WS_XB, WS_WQ), 256)
    add('attn_kernel', attn(A, 'attn_kernel'), 512)
    add('outa2_kernel', gemm96(A, 'outa2_kernel', 'out', WS_O, WS_WOA, WS_XB, ('w', WS_XC)), 256)
    add('qkvb2_kernel', k4(A, 'qkvb2_kernel', WS_XC), 576)
    add('outb2_kernel', gemm96(A, 'outb2_kernel', 'out', WS_O, WS_WOB, WS_XC, ('k', 'out')), 256)
    out = HDR
    for (n, g, b, l) in L:
        out += f'; @launch kernel={n} grid=({g},1,1) block=({b},1,1) lds={l}\n'
    out += '.amdgcn_target "amdgcn-amd-amdhsa--gfx950"\n.text\n' + A.text()
    open(path, 'w').write(out)
if __name__ == '__main__':
    build(sys.argv[1] if len(sys.argv) > 1 else 'interleave_layers__grouped_kv_mqa__sliding_local_dilated__prompt.s')
```

```python
import sys, math, struct, os
from asmlib import *

S = 2048; D = 576; H = 32; DH = 18
XBYTES = S * D * 2
WS_XA, WS_XB, WS_XC, WS_Q, WS_O, WS_KV = 0x0, 0x240000, 0x480000, 0x6C0000, 0x900000, 0xB40000
WS_XF = 0xD00000
WS_WQ, WS_WOA, WS_WOB, WS_WK, WS_WV, WS_WQKV = 0x1000000, 0x10A2000, 0x1144000, 0x11E6000, 0x11EF000, 0x1200000
WS_ST = 0x1400000
WS_CS = 0x1420000
CS_Q, CS_K, CS_V, CS_QKV = 0, 2304, 2432, 2560
CS_BYTES = 2560 + 1728 * 4
EXP = os.environ.get('EXP', '')
KA = dict(A_x=0, A_wq=8, A_wk=16, A_wv=24, A_wo=32, B_x=40, B_wqkv=48, B_wo=56, out=64, dbg=72, ws=80)
QSCALE = (DH ** -0.5) * math.log2(math.e)
def f32bits(x): return struct.unpack('<I', struct.pack('<f', x))[0]

def load_ptr(A, sdst, spec):
    if spec[0] == 'k':
        A.e(f's_load_dwordx2 s[{sdst}:{sdst+1}], s[0:1], {KA[spec[1]]}')
        return 0
    A.e(f's_load_dwordx2 s[{sdst}:{sdst+1}], s[0:1], {KA["ws"]}')
    return spec[1]

STAMP_BASE = 54
def stamp(A, i, real=False):
    if 'stamp' in os.environ.get('EXP', ''):
        A.e(f'{"s_memrealtime" if real else "s_memtime"} s[{STAMP_BASE+2*i}:{STAMP_BASE+2*i+1}]')
def stamp_flush(A, n, sws):
    if 'stamp' not in os.environ.get('EXP', ''): return
    A.e('s_waitcnt lgkmcnt(0) vmcnt(0)')
    srd(A, 88, sws, 0x100000, 0xC00000)
    A.e('v_cmp_eq_u32 vcc, 0, v0')
    A.e('s_and_saveexec_b64 s[92:93], vcc')
    A.e('s_lshl_b32 s94, s2, 6')
    A.e('v_mov_b32 v1, s94')
    for i in range(n):
        A.e(f'v_mov_b32 v2, s{STAMP_BASE+2*i}')
        A.e(f'buffer_store_dword v2, v1, s[88:91], 0 offen offset:{4*i}')
    A.e('s_mov_b64 exec, s[92:93]')

def layernorm_regs(A, va, nreg, vt, sone):
    s0, q0 = vt, vt + 4
    A.e(f's_mov_b32 s{sone}, 0x3f803f80')
    for i in range(4):
        A.e(f'v_mov_b32 v{s0+i}, 0')
        A.e(f'v_mov_b32 v{q0+i}, 0')
    for i in range(nreg):
        A.e(f'v_dot2_f32_bf16 v{s0+i%4}, v{va+i}, s{sone}, v{s0+i%4}')
        A.e(f'v_dot2_f32_bf16 v{q0+i%4}, v{va+i}, v{va+i}, v{q0+i%4}')
    A.e('s_nop 3')
    A.e(f'v_add_f32 v{s0}, v{s0}, v{s0+1}')
    A.e(f'v_add_f32 v{s0+2}, v{s0+2}, v{s0+3}')
    A.e(f'v_add_f32 v{q0}, v{q0}, v{q0+1}')
    A.e(f'v_add_f32 v{q0+2}, v{q0+2}, v{q0+3}')
    A.e(f'v_add_f32 v{s0}, v{s0}, v{s0+2}')
    A.e(f'v_add_f32 v{q0}, v{q0}, v{q0+2}')
    for op in ('v_permlane32_swap_b32', 'v_permlane16_swap_b32'):
        A.e(f'v_mov_b32 v{s0+1}, v{s0}')
        A.e(f'v_mov_b32 v{q0+1}, v{q0}')
        A.e('s_nop 1')
        A.e(f'{op} v{s0}, v{s0+1}')
        A.e(f'{op} v{q0}, v{q0+1}')
        A.e(f'v_add_f32 v{s0}, v{s0}, v{s0+1}')
        A.e(f'v_add_f32 v{q0}, v{q0}, v{q0+1}')
    inv = f32bits(1.0 / D)
    A.e(f's_mov_b32 s{sone}, 0x{inv:x}')
    A.e(f'v_mul_f32 v{s0}, s{sone}, v{s0}')
    A.e(f'v_mul_f32 v{q0}, s{sone}, v{q0}')
    A.e(f'v_fma_f32 v{q0}, -v{s0}, v{s0}, v{q0}')
    A.e(f'v_max_f32 v{q0}, 0, v{q0}')
    A.e(f'v_cvt_pk_bf16_f32 v{s0+1}, v{s0}, v{q0}')
    A.e(f'v_lshlrev_b32 v{s0}, 16, v{s0+1}')
    A.e(f'v_and_b32 v{q0}, 0xffff0000, v{s0+1}')
    A.e(f'v_add_f32 v{q0}, 0x{f32bits(1e-5):x}, v{q0}')
    A.e(f'v_cvt_pk_bf16_f32 v{q0}, v{q0}, v{q0}')
    A.e(f'v_lshlrev_b32 v{q0}, 16, v{q0}')
    A.e(f'v_sqrt_f32 v{q0}, v{q0}')
    A.e('s_nop 0')
    A.e(f'v_cvt_pk_bf16_f32 v{q0}, v{q0}, v{q0}')
    A.e(f'v_lshlrev_b32 v{q0}, 16, v{q0}')
    A.e(f'v_rcp_f32 v{q0}, v{q0}')
    A.e('s_nop 0')
    A.e(f'v_mul_f32 v{s0}, v{s0}, v{q0}')
    A.e(f's_mov_b32 s{sone}, 0xffff0000')
    t0 = vt + 8
    for i in range(nreg):
        a = va + i; t = t0 + (i % 2) * 2
        A.e(f'v_lshlrev_b32 v{t}, 16, v{a}')
        A.e(f'v_and_b32 v{t+1}, s{sone}, v{a}')
        A.e(f'v_fma_f32 v{t}, v{t}, v{q0}, -v{s0}')
        A.e(f'v_fma_f32 v{t+1}, v{t+1}, v{q0}, -v{s0}')
        A.e(f'v_cvt_pk_bf16_f32 v{a}, v{t}, v{t+1}')


class VM:
    def __init__(self): self.ops = []
    def add(self, tag): self.ops.append(tag)
    def wait_for(self, A, pred):
        last = max([i for i, t in enumerate(self.ops) if pred(t)], default=-1)
        n = len(self.ops) - 1 - last
        A.e(f's_waitcnt vmcnt({min(n, 63)})')

def reduce_g(A, regs, tmp):
    for op in ('v_permlane32_swap_b32', 'v_permlane16_swap_b32'):
        for r, t in zip(regs, tmp): A.e(f'v_mov_b32 v{t}, v{r}')
        A.e('s_nop 1')
        for r, t in zip(regs, tmp): A.e(f'{op} v{r}, v{t}')
        for r, t in zip(regs, tmp): A.e(f'v_add_f32 v{r}, v{r}, v{t}')

def stats_final(A, vs, sfree):
    for i in range(1, 6):
        A.e(f'v_add_f32 v{vs}, v{vs}, v{vs+2*i}')
        A.e(f'v_add_f32 v{vs+1}, v{vs+1}, v{vs+2*i+1}')
    s0, q0 = vs, vs + 1
    A.e(f's_mov_b32 s{sfree}, 0x{f32bits(1.0 / D):x}')
    A.e(f'v_mul_f32 v{s0}, s{sfree}, v{s0}')
    A.e(f'v_mul_f32 v{q0}, s{sfree}, v{q0}')
    A.e(f'v_fma_f32 v{q0}, -v{s0}, v{s0}, v{q0}')
    A.e(f'v_max_f32 v{q0}, 0, v{q0}')
    A.e(f'v_cvt_pk_bf16_f32 v{vs+2}, v{s0}, v{q0}')
    A.e(f'v_lshlrev_b32 v{s0}, 16, v{vs+2}')
    A.e(f'v_and_b32 v{q0}, 0xffff0000, v{vs+2}')
    A.e(f'v_add_f32 v{q0}, 0x{f32bits(1e-5):x}, v{q0}')
    A.e(f'v_cvt_pk_bf16_f32 v{q0}, v{q0}, v{q0}')
    A.e(f'v_lshlrev_b32 v{q0}, 16, v{q0}')
    A.e(f'v_sqrt_f32 v{q0}, v{q0}')
    A.e('s_nop 0')
    A.e(f'v_cvt_pk_bf16_f32 v{q0}, v{q0}, v{q0}')
    A.e(f'v_lshlrev_b32 v{q0}, 16, v{q0}')
    A.e(f'v_rcp_f32 v{q0}, v{q0}')
    A.e('s_nop 0')

def udiv(A, sd, ss, d, maxv):
    sh = 16
    while True:
        m = -(-(1 << sh) // d)
        if all((x * m) >> sh == x // d for x in range(maxv + 1)) and maxv * m < (1 << 32): break
        sh += 1
    A.e(f's_mul_i32 s{sd}, s{ss}, {m}')
    A.e(f's_lshr_b32 s{sd}, s{sd}, {sh}')

def prep(A, name):
    END = A.newlabel('end'); LW = A.newlabel('w576'); LKV = A.newlabel('wkv'); LQKV = A.newlabel('wqkv'); GATH = A.newlabel('gath')
    LX = A.newlabel('lx'); LCS2 = A.newlabel('cs2'); LCS3 = A.newlabel('cs3'); LCSL = A.newlabel('csl')
    NCS, NX, NG = 7, 32, 180
    A.lines.append(khead(name).rstrip())
    A.e(f's_cmp_ge_u32 s2, {NCS + NX + NG}')
    A.e(f's_cbranch_scc1 {END}')
    A.e('s_load_dwordx16 s[8:23], s[0:1], 0')
    A.e(f's_load_dwordx2 s[24:25], s[0:1], {KA["ws"]}')
    A.e('v_and_b32 v1, 63, v0')
    A.e('v_lshrrev_b32 v2, 6, v0')
    A.e('s_nop 0')
    A.e('v_readfirstlane_b32 s3, v2')
    A.e('v_and_b32 v2, 15, v1')
    A.e('v_lshrrev_b32 v3, 4, v1')
    A.e('v_lshlrev_b32 v4, 4, v1')
    A.e('s_waitcnt lgkmcnt(0)')
    A.e(f's_cmp_ge_u32 s2, {NCS}')
    A.e(f's_cbranch_scc1 {LX}')
    A.e('s_mov_b32 s31, 0x00020000')
    A.e('s_cmp_ge_u32 s2, 5')
    A.e(f's_cbranch_scc1 {LCS2}')
    A.e('s_mov_b32 s28, s10'); A.e('s_mov_b32 s29, s11'); A.e(f's_mov_b32 s30, {D*D*2}')
    A.e('s_movk_i32 s40, 1152'); A.e('s_lshl_b32 s36, s2, 7'); A.e('s_movk_i32 s37, 576'); A.e(f's_movk_i32 s38, {CS_Q}')
    A.e(f's_branch {LCSL}')
    A.label(LCS2)
    A.e('s_cmp_eq_u32 s2, 6')
    A.e('s_cselect_b32 s28, s14, s12'); A.e('s_cselect_b32 s29, s15, s13'); A.e(f's_cselect_b32 s38, 128, 0'); A.e(f's_add_u32 s38, s38, {CS_K}')
    A.e(f's_mov_b32 s30, {D*DH*2}')
    A.e('s_movk_i32 s40, 36'); A.e('s_mov_b32 s36, 0'); A.e('s_movk_i32 s37, 18')
    A.label(LCSL)
    for e in range(16):
        A.e(f's_mul_i32 s{48+e}, s40, {e}')
    A.e('v_lshl_add_u32 v5, v1, 1, s36')
    A.e('s_mul_i32 s41, s3, 144')
    A.e('s_mul_i32 s41, s41, s40')
    A.e('v_lshl_add_u32 v6, v5, 1, s41')
    A.e('s_lshl_b32 s41, s40, 4')
    A.e('v_mov_b32 v8, 0'); A.e('v_mov_b32 v9, 0')
    A.e('s_mov_b32 s42, 0xffff0000')
    A.e('s_mov_b32 s43, 0')
    LP = A.newlabel('cslp')
    A.label(LP)
    for e in range(16):
        A.e(f'buffer_load_dword v{16+e}, v6, s[28:31], s{48+e} offen')
    A.e('v_add_u32 v6, s41, v6')
    for e in range(16):
        A.e(f's_waitcnt vmcnt({15-e})')
        A.e(f'v_lshlrev_b32 v10, 16, v{16+e}')
        A.e(f'v_and_b32 v11, s42, v{16+e}')
        A.e('v_add_f32 v8, v8, v10')
        A.e('v_add_f32 v9, v9, v11')
    A.e('s_add_u32 s43, s43, 1')
    A.e('s_cmp_lt_u32 s43, 9')
    A.e(f's_cbranch_scc1 {LP}')
    A.e('v_lshlrev_b32 v7, 3, v0')
    A.e('ds_write_b64 v7, v[8:9]')
    A.e('s_waitcnt lgkmcnt(0)')
    A.e('s_barrier')
    A.e('s_cmp_lg_u32 s3, 0')
    A.e(f's_cbranch_scc1 {END}')
    for p in range(1, 4):
        A.e(f'ds_read_b64 v[{8+2*p}:{9+2*p}], v7 offset:{p*512}')
    srd(A, 32, 24, CS_BYTES, WS_CS)
    A.e('s_waitcnt lgkmcnt(0)')
    for p in range(1, 4):
        A.e(f'v_add_f32 v8, v8, v{8+2*p}')
        A.e(f'v_add_f32 v9, v9, v{9+2*p}')
    A.e('v_lshlrev_b32 v6, 2, v5')
    A.e('v_cmp_gt_u32 vcc, s37, v5')
    A.e('s_and_saveexec_b64 s[44:45], vcc')
    A.e('buffer_store_dwordx2 v[8:9], v6, s[32:35], s38 offen')
    A.e('s_endpgm')
    A.label(LX)
    A.e(f's_cmp_ge_u32 s2, {NCS + NX}')
    A.e(f's_cbranch_scc1 {LW}')
    A.e(f's_sub_u32 s5, s2, {NCS}')
    A.e('s_lshl_b32 s5, s5, 2')
    A.e('s_add_u32 s5, s5, s3')
    srd(A, 28, 8, XBYTES)
    srd(A, 32, 24, XBYTES, WS_XF)
    srd(A, 36, 24, 98304, WS_ST)
    A.e('s_lshl_b32 s6, s5, 4')
    A.e('v_add_u32 v7, s6, v2')
    A.e('v_mul_u32_u24 v5, 1152, v7')
    A.e('v_lshl_add_u32 v5, v3, 4, v5')
    for ks in range(18):
        A.e(f'buffer_load_dwordx4 v[{16+4*ks}:{19+4*ks}], v5, s[28:31], 0 offen offset:{ks*64}')
    A.e('s_mul_i32 s7, s5, 18432')
    A.e('v_add_u32 v6, s7, v4')
    A.e('s_mov_b32 s40, 0x3f803f80')
    for i in range(8): A.e(f'v_mov_b32 v{8+i}, 0')
    for ks in range(18):
        A.e(f's_waitcnt vmcnt({17-ks})' if ks == 0 else f's_waitcnt vmcnt({17})')
        A.e(f's_mov_b32 s41, {ks*1024}')
        A.e(f'buffer_store_dwordx4 v[{16+4*ks}:{19+4*ks}], v6, s[32:35], s41 offen')
        for i in range(4):
            A.e(f'v_dot2_f32_bf16 v{8+i}, v{16+4*ks+i}, s40, v{8+i}')
            A.e(f'v_dot2_f32_bf16 v{12+i}, v{16+4*ks+i}, v{16+4*ks+i}, v{12+i}')
    A.e('s_nop 3')
    for i in range(1, 4):
        A.e(f'v_add_f32 v8, v8, v{8+i}')
        A.e(f'v_add_f32 v12, v12, v{12+i}')
    A.e('v_mov_b32 v9, v12')
    reduce_g(A, [8, 9], [10, 11])
    for i in range(10, 20): A.e(f'v_mov_b32 v{i}, 0')
    A.e('v_mul_u32_u24 v7, 48, v7')
    A.e('v_cmp_eq_u32 vcc, 0, v3')
    A.e('s_and_saveexec_b64 s[44:45], vcc')
    for i in range(3):
        A.e(f'buffer_store_dwordx4 v[{8+4*i}:{11+4*i}], v7, s[36:39], 0 offen offset:{16*i}')
    A.e('s_endpgm')
    A.label(LW)
    A.e(f's_sub_u32 s4, s2, {NCS + NX}')
    A.e('s_lshl_b32 s4, s4, 2')
    A.e('s_add_u32 s4, s4, s3')
    A.e('s_cmp_ge_u32 s4, 648')
    A.e(f's_cbranch_scc1 {LKV}')
    udiv(A, 5, 4, 648, 1944)
    A.e('s_mul_i32 s6, s5, 648')
    A.e('s_sub_u32 s6, s4, s6')
    A.e('s_cmp_eq_u32 s5, 1')
    A.e('s_cselect_b32 s28, s16, s10')
    A.e('s_cselect_b32 s29, s17, s11')
    A.e('s_cmp_eq_u32 s5, 2')
    A.e('s_cselect_b32 s28, s22, s28')
    A.e('s_cselect_b32 s29, s23, s29')
    A.e(f's_mov_b32 s30, {D*D*2}')
    A.e('s_mov_b32 s31, 0x00020000')
    A.e(f's_mul_i32 s7, s5, {WS_WOA-WS_WQ}')
    A.e('s_lshl_b32 s26, s6, 10')
    A.e('s_add_u32 s7, s7, s26')
    A.e(f's_add_u32 s7, s7, {WS_WQ}')
    udiv(A, 36, 6, 108, 648)
    A.e('s_mul_i32 s37, s36, 108')
    A.e('s_sub_u32 s37, s6, s37')
    udiv(A, 38, 37, 6, 108)
    A.e('s_mul_i32 s39, s38, 6')
    A.e('s_sub_u32 s39, s37, s39')
    A.e('s_mul_i32 s36, s36, 96')
    A.e('s_lshl_b32 s39, s39, 4')
    A.e('s_add_u32 s36, s36, s39')
    A.e('v_add_u32 v5, s36, v2')
    A.e('v_lshlrev_b32 v5, 1, v5')
    A.e('s_movk_i32 s40, 1152')
    A.e(f's_branch {GATH}')
    A.label(LKV)
    A.e('s_sub_u32 s4, s4, 648')
    A.e('s_cmp_ge_u32 s4, 36')
    A.e('s_cselect_b32 s28, s14, s12')
    A.e('s_cselect_b32 s29, s15, s13')
    A.e(f's_mov_b32 s30, {D*DH*2}')
    A.e('s_mov_b32 s31, 0x00020000')
    A.e('s_lshl_b32 s7, s4, 10')
    A.e(f's_add_u32 s7, s7, {WS_WK}')
    A.e('s_cmp_ge_u32 s4, 36')
    A.e('s_cselect_b32 s6, 36, 0')
    A.e('s_sub_u32 s6, s4, s6')
    A.e('s_lshr_b32 s38, s6, 1')
    A.e('s_and_b32 s39, s6, 1')
    A.e('s_lshl_b32 s39, s39, 4')
    A.e('v_add_u32 v5, s39, v2')
    A.e('v_cmp_gt_u32 vcc, 18, v5')
    A.e('v_lshlrev_b32 v5, 1, v5')
    A.e('v_mov_b32 v6, 0x7f000000')
    A.e('v_cndmask_b32 v5, v6, v5, vcc')
    A.e('s_movk_i32 s40, 36')
    A.e(f's_branch {GATH}')
    A.label(GATH)
    A.e('s_lshl_b32 s38, s38, 5')
    A.e('v_lshl_add_u32 v6, v3, 3, s38')
    A.e('v_mul_lo_u32 v6, v6, s40')
    A.e('v_add_u32 v5, v5, v6')
    for e in range(8):
        A.e(f's_mul_i32 s41, s40, {e}')
        A.e(f'buffer_load_ushort v{16+e}, v5, s[28:31], s41 offen')
    srd(A, 32, 24, 0x1400000)
    A.e('s_waitcnt vmcnt(0)')
    for e in range(4):
        A.e(f'v_lshl_or_b32 v{8+e}, v{17+2*e}, 16, v{16+2*e}')
    A.e('buffer_store_dwordx4 v[8:11], v4, s[32:35], s7 offen')
    A.label(END)
    A.e('s_endpgm')
    A.lines.append(kdesc(name, 88, 72).rstrip())
    return NCS + NX + NG, 2048

def gemm96(A, name, mode, a_off, w_off, xin_off=None, out_spec=None, first=False):
    ncol = 6 if mode == 'out' else 8
    nwg = 32 * ncol
    END = A.newlabel('end')
    A.lines.append(khead(name).rstrip())
    if first:
        CSL = A.newlabel('csentry')
        A.e(f's_cmp_ge_u32 s2, {nwg + 7}')
        A.e(f's_cbranch_scc1 {END}')
        A.e(f's_cmp_ge_u32 s2, {nwg}')
        A.e(f's_cbranch_scc1 {CSL}')
        A.e(f's_load_dwordx2 s[8:9], s[0:1], {KA["A_x"]}')
    else:
        A.e(f's_cmp_ge_u32 s2, {nwg}')
        A.e(f's_cbranch_scc1 {END}')
    stamp(A, 0)
    A.e(f's_load_dwordx2 s[4:5], s[0:1], {KA["ws"]}')
    final = mode == 'out' and out_spec[0] == 'k'
    if final:
        A.e(f's_load_dwordx2 s[10:11], s[0:1], {KA["out"]}')
    if mode == 'out':
        A.e('s_lshr_b32 s28, s2, 3')
        A.e('s_mul_i32 s3, s28, 43691')
        A.e('s_lshr_b32 s3, s3, 18')
        A.e('s_mul_i32 s29, s3, 6')
        A.e('s_sub_u32 s28, s28, s29')
        A.e('s_and_b32 s29, s2, 7')
        A.e('s_lshl_b32 s29, s29, 2')
        A.e('s_add_u32 s3, s3, s29')
    else:
        A.e('s_and_b32 s3, s2, 7')
        A.e('s_lshl_b32 s3, s3, 2')
        A.e('s_lshr_b32 s28, s2, 6')
        A.e('s_add_u32 s3, s3, s28')
        A.e('s_bfe_u32 s28, s2, 0x30003')
    A.e('v_and_b32 v1, 63, v0')
    A.e('v_lshrrev_b32 v11, 6, v0')
    A.e('s_nop 0')
    A.e('v_readfirstlane_b32 s29, v11')
    A.e('v_and_b32 v12, 15, v1')
    A.e('v_lshrrev_b32 v13, 4, v1')
    A.e('v_lshlrev_b32 v4, 4, v1')
    A.e('s_lshl_b32 s30, s3, 2')
    A.e('s_add_u32 s30, s30, s29')
    A.e('s_mul_i32 s31, s30, 18432')
    A.e('v_add_u32 v2, s31, v4')
    for j in range(1, 5):
        A.e(f's_mov_b32 s{40+j}, {j*4096}')
    A.e('s_mov_b32 s40, 0')
    A.e('s_waitcnt lgkmcnt(0)')
    srd(A, 12, 4, XBYTES, a_off)
    VA, VB, VACC, VX = 16, 88, 136, 160
    VCS = 172
    def aload(ks):
        A.e(f'buffer_load_dwordx4 v[{VA+4*ks}:{VA+4*ks+3}], v2, s[12:15], s{40+ks//4} offen offset:{(ks%4)*1024}')
    def wdma(r):
        A.e(f's_add_u32 m0, s34, {r*4096}')
        A.e(f's_add_u32 s35, s33, {r*4096}')
        A.e('buffer_load_dwordx4 v4, s[16:19], s35 offen lds')
    def stats_cs_loads(ntile, cs_sreg):
        srd(A, 20, 4, 98304, WS_ST)
        srd(A, 48, 4, CS_BYTES, WS_CS)
        A.e('s_lshl_b32 s36, s30, 4')
        A.e('v_add_u32 v3, s36, v12')
        A.e('v_mul_u32_u24 v3, 48, v3')
        for i in range(3):
            A.e(f'buffer_load_dwordx4 v[{VX+4*i}:{VX+4*i+3}], v3, s[20:23], 0 offen offset:{16*i}')
        A.e('v_lshlrev_b32 v3, 4, v13')
        for t in range(ntile):
            A.e(f'buffer_load_dwordx4 v[{VCS+4*t}:{VCS+4*t+3}], v3, s[48:51], s{cs_sreg} offen offset:{64*t}')
    KVPATH = A.newlabel('kv')
    A.e('s_lshl_b32 s34, s29, 10')
    if mode == 'qkv':
        A.e('s_cmp_ge_u32 s28, 6')
        A.e(f's_cbranch_scc1 {KVPATH}')
    srd(A, 16, 4, 6 * 110592, w_off)
    A.e('s_mul_i32 s33, s28, 110592')
    A.e('s_add_u32 s33, s33, s34')
    vm = VM()
    NST, PF = 9, int(os.environ.get('PF', '3'))
    def issue_stage(st):
        for ks in (2 * st, 2 * st + 1):
            aload(ks); vm.add(st)
        for r in range(3 * st, 3 * st + 3):
            wdma(r); vm.add(st)
    def issue_aux():
        if mode == 'out':
            if not first: srd(A, 20, 4, XBYTES, xin_off)
            A.e('v_lshrrev_b32 v3, 1, v13')
            A.e('v_lshlrev_b32 v3, 8, v3')
            A.e('v_lshl_add_u32 v3, v12, 4, v3')
            A.e('v_and_b32 v11, 1, v13')
            A.e('v_lshl_add_u32 v3, v11, 3, v3')
            A.e('s_mul_i32 s36, s28, 3072')
            A.e('s_add_u32 s36, s36, s31')
            A.e('v_add_u32 v3, s36, v3')
            if first:
                srd(A, 20, 8, XBYTES)
                A.e('s_lshl_b32 s36, s30, 4')
                A.e('v_add_u32 v6, s36, v12')
                A.e('v_mul_u32_u24 v6, 1152, v6')
                A.e('v_lshl_add_u32 v6, v13, 3, v6')
                A.e('s_mul_i32 s36, s28, 192')
                A.e('v_add_u32 v6, s36, v6')
            for t in range(6):
                if first:
                    A.e(f'buffer_load_dwordx2 v[{VX+2*t}:{VX+2*t+1}], v6, s[20:23], 0 offen offset:{t*32}'); vm.add('aux')
                else:
                    A.e(f'buffer_load_dwordx2 v[{VX+2*t}:{VX+2*t+1}], v3, s[20:23], 0 offen offset:{t*512}'); vm.add('aux')
        else:
            A.e('s_mul_i32 s37, s28, 384')
            stats_cs_loads(6, 37)
            for i in range(9): vm.add('aux')
    for st in range(PF): issue_stage(st)
    A.e(f'v_add_u32 v5, {9*6144}, v4')
    for i in range(24):
        A.e(f'v_mov_b32 v{VACC+i}, 0')
    stamp(A, 1)
    def breads(ks):
        buf = VB + 24 * (ks % 2)
        for t in range(6):
            base = 4 if ks < 9 else 5
            A.e(f'ds_read_b128 v[{buf+4*t}:{buf+4*t+3}], v{base} offset:{((ks % 9) * 6 + t) * 1024}')
    def mfmas(ks):
        buf = VB + 24 * (ks % 2)
        for t in range(6):
            A.e(f'v_mfma_f32_16x16x32_bf16 v[{VACC+4*t}:{VACC+4*t+3}], v[{buf+4*t}:{buf+4*t+3}], v[{VA+4*ks}:{VA+4*ks+3}], v[{VACC+4*t}:{VACC+4*t+3}]')
    for st in range(NST):
        vm.wait_for(A, lambda t: t == st)
        A.e('s_barrier')
        if st in (0, 3, 6): stamp(A, 2 + st // 3)
        breads(2 * st)
        if st > 0:
            mfmas(2 * st - 1)
        breads(2 * st + 1)
        if st + PF < NST: issue_stage(st + PF)
        if st + PF == NST: issue_aux()
        A.e('s_waitcnt lgkmcnt(6)')
        mfmas(2 * st)
        A.e('s_waitcnt lgkmcnt(0)')
    mfmas(17)
    A.e('s_nop 7')
    stamp(A, 5)
    def rowmajor_off(vd):
        A.e('s_lshl_b32 s36, s30, 4')
        A.e(f'v_add_u32 v{vd}, s36, v12')
        A.e(f'v_mul_u32_u24 v{vd}, 1152, v{vd}')
        A.e(f'v_lshl_add_u32 v{vd}, v13, 3, v{vd}')
        A.e('s_mul_i32 s36, s28, 192')
        A.e(f'v_add_u32 v{vd}, s36, v{vd}')
    if mode == 'out':
        if final:
            srd(A, 24, 10, XBYTES)
            rowmajor_off(6)
        else:
            srd(A, 24, 4, XBYTES, out_spec[1])
        A.e('s_mov_b32 s36, 0xffff0000')
        A.e('s_waitcnt vmcnt(0)')
        for t in range(6):
            a = VACC + 4 * t; x = VX + 2 * t
            A.e(f'v_cvt_pk_bf16_f32 v{a}, v{a}, v{a+1}')
            A.e(f'v_cvt_pk_bf16_f32 v{a+1}, v{a+2}, v{a+3}')
            for h in range(2):
                A.e(f'v_lshlrev_b32 v11, 16, v{a+h}')
                A.e(f'v_and_b32 v15, s36, v{a+h}')
                A.e(f'v_lshlrev_b32 v{a+2}, 16, v{x+h}')
                A.e(f'v_and_b32 v{a+3}, s36, v{x+h}')
                A.e(f'v_add_f32 v11, v11, v{a+2}')
                A.e(f'v_add_f32 v15, v15, v{a+3}')
                A.e(f'v_cvt_pk_bf16_f32 v{x+h}, v11, v15')
            if final:
                A.e(f'buffer_store_dwordx2 v[{x}:{x+1}], v6, s[24:27], 0 offen offset:{t*32}')
            else:
                A.e(f'buffer_store_dwordx2 v[{x}:{x+1}], v3, s[24:27], 0 offen offset:{t*512}')
        if not final:
            A.e('s_mov_b32 s36, 0x3f803f80')
            for i in range(4): A.e(f'v_mov_b32 v{VB+i}, 0')
            for j in range(12):
                A.e(f'v_dot2_f32_bf16 v{VB+j%2}, v{VX+j}, s36, v{VB+j%2}')
                A.e(f'v_dot2_f32_bf16 v{VB+2+j%2}, v{VX+j}, v{VX+j}, v{VB+2+j%2}')
            A.e('s_nop 3')
            A.e(f'v_add_f32 v{VB}, v{VB}, v{VB+1}')
            A.e(f'v_add_f32 v{VB+1}, v{VB+2}, v{VB+3}')
            reduce_g(A, [VB, VB + 1], [VB + 2, VB + 3])
            srd(A, 20, 4, 98304, WS_ST)
            A.e('s_lshl_b32 s36, s30, 4')
            A.e('v_add_u32 v3, s36, v12')
            A.e('v_mul_u32_u24 v3, 48, v3')
            A.e('s_lshl_b32 s36, s28, 3')
            A.e('v_cmp_eq_u32 vcc, 0, v13')
            A.e('s_and_saveexec_b64 s[38:39], vcc')
            A.e(f'buffer_store_dwordx2 v[{VB}:{VB+1}], v3, s[20:23], s36 offen')
            A.e('s_mov_b64 exec, -1')
        if 'stamp' in EXP: A.e('s_waitcnt vmcnt(0)')
        stamp(A, 6)
        stamp_flush(A, 8, 4)
        A.e('s_endpgm')
    else:
        srd(A, 24, 4, XBYTES, WS_Q)
        rowmajor_off(3)
        A.e('s_waitcnt vmcnt(0)')
        stats_final(A, VX, 36)
        A.e(f's_mov_b32 s36, 0x{f32bits(QSCALE):x}')
        A.e(f'v_mul_f32 v{VX+1}, s36, v{VX+1}')
        for t in range(6):
            a = VACC + 4 * t
            for i in range(4):
                A.e(f'v_fma_f32 v{a+i}, -v{VX}, v{VCS+4*t+i}, v{a+i}')
                A.e(f'v_mul_f32 v{a+i}, v{VX+1}, v{a+i}')
            A.e(f'v_cvt_pk_bf16_f32 v{a}, v{a}, v{a+1}')
            A.e(f'v_cvt_pk_bf16_f32 v{a+1}, v{a+2}, v{a+3}')
            A.e(f'buffer_store_dwordx2 v[{a}:{a+1}], v3, s[24:27], 0 offen offset:{t*32}')
        if 'stamp' in EXP: A.e('s_waitcnt vmcnt(0)')
        stamp(A, 6)
        stamp_flush(A, 8, 4)
        A.e('s_endpgm')
        A.label(KVPATH)
        srd(A, 16, 4, 2 * 36864, WS_WK)
        A.e('s_sub_u32 s33, s28, 6')
        A.e('s_mul_i32 s37, s33, 128')
        A.e(f's_add_u32 s37, s37, {CS_K}')
        A.e('s_mul_i32 s33, s33, 36864')
        A.e('s_add_u32 s33, s33, s34')
        for r in range(9): wdma(r)
        for ks in range(18): aload(ks)
        stats_cs_loads(2, 37)
        for i in range(8):
            A.e(f'v_mov_b32 v{VACC+i}, 0')
        A.e('s_waitcnt vmcnt(0)')
        A.e('s_barrier')
        for ks in range(18):
            buf = VB + 8 * (ks % 6)
            for t in range(2):
                A.e(f'ds_read_b128 v[{buf+4*t}:{buf+4*t+3}], v4 offset:{(ks*2+t)*1024}')
            if ks % 3 == 2:
                A.e('s_waitcnt lgkmcnt(0)')
                for k2 in range(ks - 2, ks + 1):
                    b2 = VB + 8 * (k2 % 6)
                    for t in range(2):
                        A.e(f'v_mfma_f32_16x16x32_bf16 v[{VACC+4*t}:{VACC+4*t+3}], v[{b2+4*t}:{b2+4*t+3}], v[{VA+4*k2}:{VA+4*k2+3}], v[{VACC+4*t}:{VACC+4*t+3}]')
        A.e('s_nop 7')
        stats_final(A, VX, 36)
        for i in range(8):
            A.e(f'v_fma_f32 v{VACC+i}, -v{VX}, v{VCS+i}, v{VACC+i}')
            A.e(f'v_mul_f32 v{VACC+i}, v{VX+1}, v{VACC+i}')
        srd(A, 24, 4, 163840, WS_KV)
        A.e('s_lshl_b32 s36, s30, 4')
        A.e('v_add_u32 v11, s36, v12')
        A.e('v_lshrrev_b32 v15, 8, v11')
        A.e('v_mul_u32_u24 v15, 20480, v15')
        A.e('v_and_b32 v11, 255, v11')
        VPATH = A.newlabel('vp')
        A.e('s_cmp_eq_u32 s28, 7')
        A.e(f's_cbranch_scc1 {VPATH}')
        a = VACC
        A.e(f'v_cvt_pk_bf16_f32 v{a}, v{a}, v{a+1}')
        A.e(f'v_cvt_pk_bf16_f32 v{a+1}, v{a+2}, v{a+3}')
        A.e('v_lshl_add_u32 v3, v11, 5, v15')
        A.e('v_lshl_add_u32 v3, v13, 3, v3')
        A.e(f'buffer_store_dwordx2 v[{a}:{a+1}], v3, s[24:27], 0 offen')
        A.e(f'v_cvt_pk_bf16_f32 v{a+4}, v{a+4}, v{a+5}')
        A.e(f'v_mov_b32 v{a+5}, 0x3f80')
        A.e('v_lshl_add_u32 v3, v11, 3, v15')
        A.e('v_cmp_eq_u32 vcc, 0, v13')
        A.e('s_mov_b32 s37, 8192')
        A.e('s_and_saveexec_b64 s[38:39], vcc')
        A.e(f'buffer_store_dwordx2 v[{a+4}:{a+5}], v3, s[24:27], s37 offen')
        A.e('s_endpgm')
        A.label(VPATH)
        A.e('v_lshrrev_b32 v3, 4, v11')
        A.e('v_mul_u32_u24 v3, 640, v3')
        A.e('v_add_u32 v3, v3, v15')
        A.e('v_add_u32 v3, 10240, v3')
        A.e('v_bfe_u32 v7, v11, 2, 1')
        A.e('v_lshl_add_u32 v3, v7, 4, v3')
        A.e('v_and_b32 v7, 3, v11')
        A.e('v_lshl_add_u32 v3, v7, 1, v3')
        A.e('v_bfe_u32 v7, v11, 3, 1')
        A.e('v_lshl_add_u32 v3, v7, 3, v3')
        A.e('v_lshl_add_u32 v8, v13, 7, v3')
        a = VACC
        A.e(f'v_cvt_pk_bf16_f32 v{a}, v{a}, v{a+1}')
        A.e(f'v_cvt_pk_bf16_f32 v{a+1}, v{a+2}, v{a+3}')
        A.e(f'v_cvt_pk_bf16_f32 v{a+4}, v{a+4}, v{a+5}')
        A.e(f'v_mov_b32 v{a+5}, 0x3f80')
        A.e(f'buffer_store_short v{a}, v8, s[24:27], 0 offen offset:0')
        A.e(f'buffer_store_short_d16_hi v{a}, v8, s[24:27], 0 offen offset:32')
        A.e(f'buffer_store_short v{a+1}, v8, s[24:27], 0 offen offset:64')
        A.e(f'buffer_store_short_d16_hi v{a+1}, v8, s[24:27], 0 offen offset:96')
        A.e('v_cmp_eq_u32 vcc, 0, v13')
        A.e('s_and_saveexec_b64 s[38:39], vcc')
        A.e(f'buffer_store_short v{a+4}, v3, s[24:27], 0 offen offset:{16*32}')
        A.e(f'buffer_store_short_d16_hi v{a+4}, v3, s[24:27], 0 offen offset:{17*32}')
        A.e(f'buffer_store_short v{a+5}, v3, s[24:27], 0 offen offset:{18*32}')
        A.e(f'buffer_store_short_d16_hi v{a+5}, v3, s[24:27], 0 offen offset:{19*32}')
        A.e('s_endpgm')
    if first:
        A.label(CSL)
        colsum_code(A, nwg, END)
    A.label(END)
    A.e('s_endpgm')
    A.lines.append(kdesc(name, 200, 100).rstrip())
    return nwg + (7 if first else 0), 110592


def gather_decode(A, sb, sd, vn, vg, voff, vtmp, sp):
    L1 = A.newlabel('gkv'); L2 = A.newlabel('gq'); LD = A.newlabel('gd')
    t = sd + 6
    A.e(f's_mov_b32 s{sd+3}, 0x00020000')
    A.e(f's_cmp_ge_u32 s{sb}, 1944')
    A.e(f's_cbranch_scc1 {L1}')
    A.e(f's_cmp_ge_u32 s{sb}, 648')
    A.e(f's_cselect_b32 s{sd}, s{sp+8}, s{sp+2}')
    A.e(f's_cselect_b32 s{sd+1}, s{sp+9}, s{sp+3}')
    A.e(f's_cselect_b32 s{t}, 648, 0')
    A.e(f's_cmp_ge_u32 s{sb}, 1296')
    A.e(f's_cselect_b32 s{sd}, s{sp+14}, s{sd}')
    A.e(f's_cselect_b32 s{sd+1}, s{sp+15}, s{sd+1}')
    A.e(f's_cselect_b32 s{t}, 1296, s{t}')
    A.e(f's_mov_b32 s{sd+2}, {D*D*2}')
    A.e(f's_lshl_b32 s{sd+5}, s{sb}, 10')
    A.e(f's_add_u32 s{sd+5}, s{sd+5}, {WS_WQ}')
    A.e(f's_sub_u32 s{t}, s{sb}, s{t}')
    udiv(A, t + 1, t, 108, 648)
    A.e(f's_mul_i32 s{t+2}, s{t+1}, 108')
    A.e(f's_sub_u32 s{t+2}, s{t}, s{t+2}')
    udiv(A, t + 3, t + 2, 6, 108)
    A.e(f's_mul_i32 s{t+4}, s{t+3}, 6')
    A.e(f's_sub_u32 s{t+4}, s{t+2}, s{t+4}')
    A.e(f's_mul_i32 s{t+1}, s{t+1}, 96')
    A.e(f's_lshl_b32 s{t+4}, s{t+4}, 4')
    A.e(f's_add_u32 s{t+1}, s{t+1}, s{t+4}')
    A.e(f'v_add_u32 v{voff}, s{t+1}, v{vn}')
    A.e(f'v_lshlrev_b32 v{voff}, 1, v{voff}')
    A.e(f's_movk_i32 s{sd+4}, 1152')
    A.e(f's_branch {LD}')
    A.label(L1)
    A.e(f's_cmp_ge_u32 s{sb}, 2016')
    A.e(f's_cbranch_scc1 {L2}')
    A.e(f's_sub_u32 s{t}, s{sb}, 1944')
    A.e(f's_lshl_b32 s{sd+5}, s{t}, 10')
    A.e(f's_add_u32 s{sd+5}, s{sd+5}, {WS_WK}')
    A.e(f's_cmp_ge_u32 s{t}, 36')
    A.e(f's_cselect_b32 s{sd}, s{sp+6}, s{sp+4}')
    A.e(f's_cselect_b32 s{sd+1}, s{sp+7}, s{sp+5}')
    A.e(f's_cselect_b32 s{t+1}, 36, 0')
    A.e(f's_mov_b32 s{sd+2}, {D*DH*2}')
    A.e(f's_sub_u32 s{t}, s{t}, s{t+1}')
    A.e(f's_lshr_b32 s{t+3}, s{t}, 1')
    A.e(f's_and_b32 s{t+4}, s{t}, 1')
    A.e(f's_lshl_b32 s{t+4}, s{t+4}, 4')
    A.e(f'v_add_u32 v{voff}, s{t+4}, v{vn}')
    A.e(f'v_cmp_gt_u32 vcc, 18, v{voff}')
    A.e(f'v_lshlrev_b32 v{voff}, 1, v{voff}')
    A.e(f'v_mov_b32 v{vtmp}, 0x7f000000')
    A.e(f'v_cndmask_b32 v{voff}, v{vtmp}, v{voff}, vcc')
    A.e(f's_movk_i32 s{sd+4}, 36')
    A.e(f's_branch {LD}')
    A.label(L2)
    A.e(f's_mov_b32 s{sd}, s{sp+12}')
    A.e(f's_mov_b32 s{sd+1}, s{sp+13}')
    A.e(f's_mov_b32 s{sd+2}, {D*3*D*2}')
    A.e(f's_sub_u32 s{t}, s{sb}, 2016')
    A.e(f's_lshl_b32 s{sd+5}, s{t}, 10')
    A.e(f's_add_u32 s{sd+5}, s{sd+5}, {WS_WQKV}')
    A.e(f's_cmp_ge_u32 s{sb}, 4032')
    A.e(f's_cselect_b32 s{sd+5}, 0x7f000000, s{sd+5}')
    A.e(f's_cselect_b32 s{t}, 0, s{t}')
    A.e(f's_cselect_b32 s{t+5}, 0, 108')
    udiv(A, t + 1, t, 126, 2016)
    A.e(f's_mul_i32 s{t+2}, s{t+1}, 126')
    A.e(f's_sub_u32 s{t+2}, s{t}, s{t+2}')
    udiv(A, t + 3, t + 2, 7, 126)
    A.e(f's_mul_i32 s{t+4}, s{t+3}, 7')
    A.e(f's_sub_u32 s{t+4}, s{t+2}, s{t+4}')
    A.e(f's_lshl_b32 s{t+4}, s{t+4}, 4')
    A.e(f'v_add_u32 v{voff}, s{t+4}, v{vn}')
    A.e(f'v_mul_u32_u24 v{vtmp}, 57, v{voff}')
    A.e(f'v_lshrrev_b32 v{vtmp}, 11, v{vtmp}')
    A.e(f'v_mul_u32_u24 v{vtmp}, 540, v{vtmp}')
    A.e(f'v_add_u32 v{vtmp}, v{vtmp}, v{voff}')
    A.e(f's_mul_i32 s{t+1}, s{t+1}, 36')
    A.e(f'v_add_u32 v{vtmp}, s{t+1}, v{vtmp}')
    A.e(f'v_cmp_gt_u32 vcc, s{t+5}, v{voff}')
    A.e(f'v_lshlrev_b32 v{voff}, 1, v{vtmp}')
    A.e(f'v_mov_b32 v{vtmp}, 0x7f000000')
    A.e(f'v_cndmask_b32 v{voff}, v{vtmp}, v{voff}, vcc')
    A.e(f's_movk_i32 s{sd+4}, 3456')
    A.label(LD)
    A.e(f's_lshl_b32 s{t+3}, s{t+3}, 5')
    A.e(f'v_lshl_add_u32 v{vtmp}, v{vg}, 3, s{t+3}')
    A.e(f'v_mul_lo_u32 v{vtmp}, v{vtmp}, s{sd+4}')
    A.e(f'v_add_u32 v{voff}, v{voff}, v{vtmp}')


def colsum_code(A, base, END):
    LCS2 = A.newlabel('cs2'); LCSL = A.newlabel('csl'); LP = A.newlabel('cslp')
    A.e(f's_load_dwordx4 s[8:11], s[0:1], {KA["A_wq"]}')
    A.e(f's_load_dwordx2 s[12:13], s[0:1], {KA["A_wv"]}')
    A.e(f's_load_dwordx2 s[24:25], s[0:1], {KA["ws"]}')
    A.e(f's_sub_u32 s2, s2, {base}')
    A.e('v_and_b32 v1, 63, v0')
    A.e('v_lshrrev_b32 v2, 6, v0')
    A.e('s_nop 0')
    A.e('v_readfirstlane_b32 s3, v2')
    A.e('s_waitcnt lgkmcnt(0)')
    A.e('s_mov_b32 s31, 0x00020000')
    A.e('s_cmp_ge_u32 s2, 5')
    A.e(f's_cbranch_scc1 {LCS2}')
    A.e('s_mov_b32 s28, s8'); A.e('s_mov_b32 s29, s9'); A.e(f's_mov_b32 s30, {D*D*2}')
    A.e('s_movk_i32 s40, 1152'); A.e('s_lshl_b32 s36, s2, 7'); A.e('s_movk_i32 s37, 576'); A.e(f's_movk_i32 s38, {CS_Q}')
    A.e(f's_branch {LCSL}')
    A.label(LCS2)
    A.e('s_cmp_eq_u32 s2, 6')
    A.e('s_cselect_b32 s28, s12, s10'); A.e('s_cselect_b32 s29, s13, s11'); A.e('s_cselect_b32 s38, 128, 0'); A.e(f's_add_u32 s38, s38, {CS_K}')
    A.e(f's_mov_b32 s30, {D*DH*2}')
    A.e('s_movk_i32 s40, 36'); A.e('s_mov_b32 s36, 0'); A.e('s_movk_i32 s37, 18')
    A.label(LCSL)
    for e in range(16):
        A.e(f's_mul_i32 s{48+e}, s40, {e}')
    A.e('v_lshl_add_u32 v5, v1, 1, s36')
    A.e('s_mul_i32 s41, s3, 144')
    A.e('s_mul_i32 s41, s41, s40')
    A.e('v_lshl_add_u32 v6, v5, 1, s41')
    A.e('s_lshl_b32 s41, s40, 4')
    A.e('v_mov_b32 v8, 0'); A.e('v_mov_b32 v9, 0')
    A.e('s_mov_b32 s42, 0xffff0000')
    A.e('s_mov_b32 s43, 0')
    A.label(LP)
    for e in range(16):
        A.e(f'buffer_load_dword v{16+e}, v6, s[28:31], s{48+e} offen')
    A.e('v_add_u32 v6, s41, v6')
    for e in range(16):
        A.e(f's_waitcnt vmcnt({15-e})')
        A.e(f'v_lshlrev_b32 v10, 16, v{16+e}')
        A.e(f'v_and_b32 v11, s42, v{16+e}')
        A.e('v_add_f32 v8, v8, v10')
        A.e('v_add_f32 v9, v9, v11')
    A.e('s_add_u32 s43, s43, 1')
    A.e('s_cmp_lt_u32 s43, 9')
    A.e(f's_cbranch_scc1 {LP}')
    A.e('v_lshlrev_b32 v7, 3, v0')
    A.e('ds_write_b64 v7, v[8:9]')
    A.e('s_waitcnt lgkmcnt(0)')
    A.e('s_barrier')
    A.e('s_cmp_lg_u32 s3, 0')
    A.e(f's_cbranch_scc1 {END}')
    for p in range(1, 4):
        A.e(f'ds_read_b64 v[{8+2*p}:{9+2*p}], v7 offset:{p*512}')
    srd(A, 32, 24, CS_BYTES, WS_CS)
    A.e('s_waitcnt lgkmcnt(0)')
    for p in range(1, 4):
        A.e(f'v_add_f32 v8, v8, v{8+2*p}')
        A.e(f'v_add_f32 v9, v9, v{9+2*p}')
    A.e('v_lshlrev_b32 v6, 2, v5')
    A.e('v_cmp_gt_u32 vcc, s37, v5')
    A.e('s_and_saveexec_b64 s[44:45], vcc')
    A.e('buffer_store_dwordx2 v[8:9], v6, s[32:35], s38 offen')
    A.e('s_endpgm')
```

```python
from asmlib import *
from gen import *

def attn(A, name, gather=False):
    END = A.newlabel('end')
    A.lines.append(khead(name).rstrip())
    QA, QB = 8, 12
    KLO = [16, 20]; KHI = [24, 28]
    VV = [32, 40]
    SS = [48, 64]
    P = 80
    O = 88
    aK, aH, aV = 104, 105, 106
    nK, nH, nV = 107, 108, 109
    cK, cH, cV = 110, 111, 112
    T = 113
    A.e('s_cmp_ge_u32 s2, 256')
    A.e(f's_cbranch_scc1 {END}')
    stamp(A, 0)
    stamp(A, 6, True)
    A.e(f's_load_dwordx2 s[4:5], s[0:1], {KA["ws"]}')
    if gather:
        A.e('s_load_dwordx16 s[48:63], s[0:1], 0')
    A.e('v_and_b32 v1, 63, v0')
    A.e('v_lshrrev_b32 v2, 6, v0')
    A.e('s_nop 0')
    A.e('v_readfirstlane_b32 s20, v2')
    A.e('v_and_b32 v2, 31, v1')
    A.e('v_lshrrev_b32 v3, 5, v1')
    A.e('s_lshl_b32 s21, s2, 3')
    A.e('s_add_u32 s21, s21, s20')
    A.e('s_mul_i32 s22, s21, 1152')
    A.e('v_mul_u32_u24 v4, 36, v2')
    A.e('v_add_u32 v4, s22, v4')
    A.e('v_lshl_add_u32 v5, v3, 4, v4')
    A.e('v_lshlrev_b32 v6, 4, v1')
    A.e('s_waitcnt lgkmcnt(0)')
    srd(A, 8, 4, XBYTES, WS_Q)
    srd(A, 12, 4, 163840, WS_KV)
    srd(A, 16, 4, XBYTES, WS_O)
    A.e(f'buffer_load_dwordx4 v[{QA}:{QA+3}], v5, s[8:11], 0 offen')
    A.e(f'buffer_load_dword v{QB}, v4, s[8:11], 0 offen offset:32')
    A.e('s_lshl_b32 s23, s20, 10')
    for n in range(3):
        A.e(f's_add_u32 s24, s23, {n*8192}')
        A.e('s_mov_b32 m0, s24')
        A.e('s_nop 0')
        A.e('buffer_load_dwordx4 v6, s[12:15], s24 offen lds')
    A.e('s_add_u32 s24, s24, 8192')
    A.e('s_add_u32 s25, s23, 163840')
    GX = 16 if gather else 0
    if gather:
        A.e('v_and_b32 v113, 15, v1')
        A.e('v_lshrrev_b32 v114, 4, v1')
        for bi in range(2):
            A.e(f's_add_u32 s44, s21, {2048*bi}')
            sd = 74 if bi == 0 else 44 + 4
            sd = (76, 88)[bi]
            gather_decode(A, 44, sd, 113, 114, 115, 116, 48)
            A.e(f'v_mov_b32 v{118+bi}, v115')
    A.e(f'v_lshlrev_b32 v{cK}, 5, v2')
    A.e(f'v_lshl_add_u32 v{cK}, v3, 4, v{cK}')
    A.e(f'v_add_u32 v{cV}, 10240, v{cK}')
    A.e(f'v_lshlrev_b32 v{cH}, 3, v2')
    A.e(f'v_add_u32 v{cH}, 8192, v{cH}')
    for r in (KHI[0] + 2, KHI[0] + 3, KHI[1] + 2, KHI[1] + 3, QB + 1, QB + 2, QB + 3):
        A.e(f'v_mov_b32 v{r}, 0')
    A.e('v_cmp_eq_u32 s[26:27], 0, v3')
    A.e('s_mov_b32 s28, 1')
    stamp(A, 1)
    A.e('s_waitcnt vmcnt(0)')
    A.e(f'v_cndmask_b32 v{QB}, 0, v{QB}, s[26:27]')
    A.e('s_barrier')
    stamp(A, 2)
    A.e(f'ds_read_b128 v[{KLO[0]}:{KLO[0]+3}], v{cK}')
    A.e(f'ds_read_b64 v[{KHI[0]}:{KHI[0]+1}], v{cH}')
    A.e('s_waitcnt lgkmcnt(0)')
    s = SS[0]
    A.e(f'v_mfma_f32_32x32x16_bf16 v[{s}:{s+15}], v[{KLO[0]}:{KLO[0]+3}], v[{QA}:{QA+3}], 0')
    A.e(f'v_mfma_f32_32x32x16_bf16 v[{s}:{s+15}], v[{KHI[0]}:{KHI[0]+3}], v[{QB}:{QB+3}], v[{s}:{s+15}]')
    A.e('s_nop 15')
    A.e(f'v_max3_f32 v{T}, v{s}, v{s+1}, v{s+2}')
    for i in range(3, 15, 2):
        A.e(f'v_max3_f32 v{T}, v{T}, v{s+i}, v{s+i+1}')
    A.e(f'v_max_f32 v{T}, v{T}, v{s+15}')
    SETM = A.newlabel('setm')
    A.label(SETM)
    A.e(f'v_mov_b32 v{T+1}, v{T}')
    A.e('s_nop 1')
    A.e(f'v_permlane32_swap_b32 v{T}, v{T+1}')
    A.e(f'v_max_f32 v{T}, v{T}, v{T+1}')
    A.e(f'v_cvt_pk_bf16_f32 v{T}, v{T}, v{T}')
    A.e(f'v_and_b32 v{T}, 0xffff, v{T}')
    A.e(f'v_xor_b32 v{T}, 0x8000, v{T}')
    A.e(f'v_cndmask_b32 v{QB+1}, 0, v{T}, s[26:27]')
    for i in range(16):
        A.e(f'v_mov_b32 v{O+i}, 0')
    for i in range(4):
        A.e(f'v_mov_b32 v{P+4+i}, 0')
        A.e(f'v_mov_b32 v{VV[1]+4+i}, 0')
    for c_, a_, n_ in ((cK, aK, nK), (cH, aH, nH), (cV, aV, nV)):
        A.e(f'v_mov_b32 v{a_}, v{c_}')
        A.e(f'v_add_u32 v{n_}, 20480, v{c_}')
    A.e(f'ds_read_b128 v[{KLO[0]}:{KLO[0]+3}], v{cK}')
    A.e(f'ds_read_b64 v[{KHI[0]}:{KHI[0]+1}], v{cH}')
    A.e(f'ds_read_b128 v[{KLO[1]}:{KLO[1]+3}], v{cK} offset:1024')
    A.e(f'ds_read_b64 v[{KHI[1]}:{KHI[1]+1}], v{cH} offset:256')
    A.e(f'ds_read_b128 v[{VV[0]}:{VV[0]+3}], v{cV}')
    A.e(f'ds_read_b128 v[{VV[0]+4}:{VV[0]+7}], v{cV} offset:640')
    A.e('s_mov_b32 s29, 0')
    A.e('s_waitcnt lgkmcnt(4)')
    A.e(f'v_mfma_f32_32x32x16_bf16 v[{s}:{s+15}], v[{KLO[0]}:{KLO[0]+3}], v[{QA}:{QA+3}], 0')
    A.e(f'v_mfma_f32_32x32x16_bf16 v[{s}:{s+15}], v[{KHI[0]}:{KHI[0]+3}], v[{QB}:{QB+3}], v[{s}:{s+15}]')
    A.e('s_nop 7')
    stamp(A, 3)
    LOOP = A.newlabel('loop')
    A.label(LOOP)
    for j in range(8):
        p = j % 2
        if j == 6:
            SK = A.newlabel('nosync'); L5 = A.newlabel('l5'); L0 = A.newlabel('l0'); LB = A.newlabel('lb')
            A.e('s_cmp_eq_u32 s28, 0')
            A.e(f's_cbranch_scc1 {SK}')
            A.e('s_cmp_eq_u32 s29, 1')
            A.e(f's_cbranch_scc1 {L5}')
            A.e('s_cmp_eq_u32 s29, 3')
            A.e(f's_cbranch_scc1 {L0}')
            A.e('s_cmp_lg_u32 s29, 0')
            A.e(f's_cbranch_scc1 {SK}')
            A.e('s_waitcnt vmcnt(4)')
            A.e(f's_branch {LB}')
            A.label(L5)
            A.e('s_waitcnt vmcnt(7)')
            A.e(f's_branch {LB}')
            A.label(L0)
            A.e('s_waitcnt vmcnt(0)')
            A.label(LB)
            A.e('s_barrier')
            A.label(SK)
        j2 = j + 2
        ak, ah = (aK, aH) if j2 < 8 else (nK, nH)
        A.e(f'ds_read_b128 v[{KLO[p]}:{KLO[p]+3}], v{ak} offset:{(j2%8)*1024}')
        A.e(f'ds_read_b64 v[{KHI[p]}:{KHI[p]+1}], v{ah} offset:{(j2%8)*256}')
        A.e(f'v_mfma_f32_32x32x16_bf16 v[{O}:{O+15}], v[{VV[1-p]+4}:{VV[1-p]+7}], v[{P+4}:{P+7}], v[{O}:{O+15}]')
        j1 = j + 1
        av = aV if j1 < 8 else nV
        A.e(f'ds_read_b128 v[{VV[1-p]}:{VV[1-p]+3}], v{av} offset:{(j1%8)*1280}')
        A.e(f'ds_read_b128 v[{VV[1-p]+4}:{VV[1-p]+7}], v{av} offset:{(j1%8)*1280+640}')
        A.e('s_waitcnt lgkmcnt(4)')
        sn = SS[1 - p]; sc = SS[p]
        A.e(f'v_mfma_f32_32x32x16_bf16 v[{sn}:{sn+15}], v[{KLO[1-p]}:{KLO[1-p]+3}], v[{QA}:{QA+3}], 0')
        for r in range(0, 4): A.e(f'v_exp_f32 v{sc+r}, v{sc+r}')
        A.e(f'v_mfma_f32_32x32x16_bf16 v[{sn}:{sn+15}], v[{KHI[1-p]}:{KHI[1-p]+3}], v[{QB}:{QB+3}], v[{sn}:{sn+15}]')
        for r in range(4, 8): A.e(f'v_exp_f32 v{sc+r}, v{sc+r}')
        for r in range(0, 4): A.e(f'v_cvt_pk_bf16_f32 v{P+r}, v{sc+2*r}, v{sc+2*r+1}')
        for r in range(8, 12): A.e(f'v_exp_f32 v{sc+r}, v{sc+r}')
        A.e(f'v_mfma_f32_32x32x16_bf16 v[{O}:{O+15}], v[{VV[p]}:{VV[p]+3}], v[{P}:{P+3}], v[{O}:{O+15}]')
        for r in range(12, 16): A.e(f'v_exp_f32 v{sc+r}, v{sc+r}')
        for r in range(4, 8): A.e(f'v_cvt_pk_bf16_f32 v{P+r}, v{sc+2*r}, v{sc+2*r+1}')
        ND = A.newlabel('nodma')
        A.e('s_cmp_ge_u32 s24, s25')
        A.e(f's_cbranch_scc1 {ND}')
        A.e('s_mov_b32 m0, s24')
        A.e('s_nop 0')
        A.e('buffer_load_dwordx4 v6, s[12:15], s24 offen lds')
        A.e('s_add_u32 s24, s24, 8192')
        A.label(ND)
        if gather and j == 0:
            NG_ = A.newlabel('nog')
            A.e('s_cmp_lg_u32 s29, 4')
            A.e(f's_cbranch_scc1 {NG_}')
            A.e('s_cmp_eq_u32 s28, 0')
            A.e(f's_cbranch_scc1 {NG_}')
            for bi in range(2):
                sd = (76, 88)[bi]
                for e in range(8):
                    A.e(f's_mul_i32 s45, s{sd+4}, {e}')
                    A.e(f'buffer_load_ushort v{120+8*bi+e}, v{118+bi}, s[{sd}:{sd+3}], s45 offen')
            A.label(NG_)
    A.e('s_add_u32 s29, s29, 1')
    A.e('s_add_u32 s30, s29, 1')
    A.e('s_and_b32 s30, s30, 7')
    A.e('s_mul_i32 s30, s30, 20480')
    for c_, a_, n_ in ((cK, aK, nK), (cH, aH, nH), (cV, aV, nV)):
        A.e(f'v_mov_b32 v{a_}, v{n_}')
        A.e(f'v_add_u32 v{n_}, s30, v{c_}')
    A.e('s_cmp_lt_u32 s29, 8')
    A.e(f's_cbranch_scc1 {LOOP}')
    A.e(f'v_mfma_f32_32x32x16_bf16 v[{O}:{O+15}], v[{VV[1]+4}:{VV[1]+7}], v[{P+4}:{P+7}], v[{O}:{O+15}]')
    A.e('s_waitcnt lgkmcnt(0)')
    A.e('s_nop 15')
    A.e('s_nop 3')
    stamp(A, 4)
    EPI = A.newlabel('epi')
    A.e('s_mov_b32 s31, 0x71800000')
    A.e('s_mov_b64 s[32:33], 0')
    for r in range(11):
        A.e(f'v_cmp_nlt_f32 s[34:35], |v{O+r}|, s31')
        A.e('s_or_b64 s[32:33], s[32:33], s[34:35]')
    A.e('s_cmp_eq_u64 s[32:33], 0')
    A.e(f's_cbranch_scc1 {EPI}')
    A.e('s_cmp_eq_u32 s28, 0')
    A.e(f's_cbranch_scc1 {EPI}')
    A.e('s_mov_b32 s28, 0')
    A.e('s_waitcnt vmcnt(0)')
    A.e(f'v_mov_b32 v{QB+1}, 0')
    A.e(f'v_mov_b32 v{T}, 0xff800000')
    A.e(f'v_mov_b32 v{aK}, v{cK}')
    A.e(f'v_mov_b32 v{aH}, v{cH}')
    A.e('s_mov_b32 s29, 0')
    FL = A.newlabel('fl')
    A.label(FL)
    for j in range(8):
        A.e(f'ds_read_b128 v[{KLO[0]}:{KLO[0]+3}], v{aK} offset:{j*1024}')
        A.e(f'ds_read_b64 v[{KHI[0]}:{KHI[0]+1}], v{aH} offset:{j*256}')
        A.e('s_waitcnt lgkmcnt(0)')
        A.e(f'v_mfma_f32_32x32x16_bf16 v[{s}:{s+15}], v[{KLO[0]}:{KLO[0]+3}], v[{QA}:{QA+3}], 0')
        A.e(f'v_mfma_f32_32x32x16_bf16 v[{s}:{s+15}], v[{KHI[0]}:{KHI[0]+3}], v[{QB}:{QB+3}], v[{s}:{s+15}]')
        A.e('s_nop 15')
        for i in range(0, 16, 2):
            A.e(f'v_max3_f32 v{T}, v{T}, v{s+i}, v{s+i+1}')
    A.e(f'v_add_u32 v{aK}, 20480, v{aK}')
    A.e(f'v_add_u32 v{aH}, 20480, v{aH}')
    A.e('s_add_u32 s29, s29, 1')
    A.e('s_cmp_lt_u32 s29, 8')
    A.e(f's_cbranch_scc1 {FL}')
    A.e(f's_branch {SETM}')
    A.label(EPI)
    A.e(f'v_mov_b32 v{T}, v{O+10}')
    A.e(f'v_mov_b32 v{T+1}, v{O+10}')
    A.e('s_nop 1')
    A.e(f'v_permlane32_swap_b32 v{T}, v{T+1}')
    A.e(f'v_rcp_f32 v{T}, v{T}')
    A.e('s_nop 0')
    for r in range(10):
        A.e(f'v_mul_f32 v{O+r}, v{O+r}, v{T}')
    for r in range(5):
        A.e(f'v_cvt_pk_bf16_f32 v{P+r}, v{O+2*r}, v{O+2*r+1}')
    A.e('s_lshr_b32 s22, s21, 4')
    A.e('s_mul_i32 s22, s22, 18432')
    A.e('s_and_b32 s23, s21, 15')
    A.e('s_lshl_b32 s23, s23, 4')
    A.e('s_add_u32 s22, s22, s23')
    A.e('v_mul_u32_u24 v4, 18, v2')
    A.e('v_lshl_add_u32 v4, v3, 2, v4')
    for j, dk in enumerate((0, 2, 8, 10, 16)):
        A.e(f'v_add_u32 v5, {dk}, v4')
        A.e('v_lshrrev_b32 v6, 3, v5')
        A.e('v_and_b32 v5, 7, v5')
        A.e('v_lshlrev_b32 v5, 1, v5')
        A.e('v_lshl_add_u32 v5, v6, 8, v5')
        if j == 4:
            A.e('s_and_b64 exec, exec, s[26:27]')
        A.e(f'buffer_store_dword v{P+j}, v5, s[16:19], s22 offen')
    A.e('s_mov_b64 exec, -1')
    if gather:
        A.e('s_waitcnt vmcnt(5)')
        srd(A, 8, 4, 0x1400000)
        A.e('v_lshlrev_b32 v6, 4, v1')
        for bi in range(2):
            sd = (76, 88)[bi]
            for e in range(4):
                A.e(f'v_lshl_or_b32 v{48+4*bi+e}, v{121+8*bi+2*e}, 16, v{120+8*bi+2*e}')
            A.e(f'buffer_store_dwordx4 v[{48+4*bi}:{51+4*bi}], v6, s[8:11], s{sd+5} offen')
    if 'stamp' in EXP: A.e('s_waitcnt vmcnt(0)')
    stamp(A, 5)
    stamp(A, 7, True)
    stamp_flush(A, 8, 4)
    A.label(END)
    A.e('s_endpgm')
    A.lines.append(kdesc(name, 136 if gather else 120, 100).rstrip())
    return 256, 163840
```

```python
from asmlib import *
from gen import *

def k4(A, name, a_off):
    END = A.newlabel('end')
    A.lines.append(khead(name).rstrip())
    VA, VB, VACC = 16, 88, 120
    VT = 88
    RS = 232
    A.e('s_cmp_ge_u32 s2, 256')
    A.e(f's_cbranch_scc1 {END}')
    stamp(A, 0)
    A.e(f's_load_dwordx2 s[8:9], s[0:1], {KA["ws"]}')
    A.e('s_bfe_u32 s3, s2, 0x20001')
    A.e('s_lshl_b32 s3, s3, 2')
    A.e('s_lshr_b32 s28, s2, 6')
    A.e('s_add_u32 s3, s3, s28')
    A.e('s_and_b32 s28, s2, 1')
    A.e('s_lshl_b32 s28, s28, 3')
    A.e('s_bfe_u32 s29, s2, 0x30003')
    A.e('s_add_u32 s28, s28, s29')
    A.e('v_and_b32 v1, 63, v0')
    A.e('v_lshrrev_b32 v11, 6, v0')
    A.e('s_nop 0')
    A.e('v_readfirstlane_b32 s29, v11')
    A.e('v_and_b32 v12, 15, v1')
    A.e('v_lshrrev_b32 v13, 4, v1')
    A.e('v_lshlrev_b32 v4, 4, v1')
    A.e('s_add_u32 s30, s29, 1')
    A.e('s_cmp_eq_u32 s29, 8')
    A.e('s_cselect_b32 s30, 0, s30')
    A.e('s_lshl_b32 s31, s3, 3')
    A.e('s_add_u32 s31, s31, s30')
    A.e('s_sub_u32 s31, s31, 1')
    A.e('s_mul_i32 s31, s31, 18432')
    A.e('v_add_u32 v2, s31, v4')
    for j in range(1, 5):
        A.e(f's_mov_b32 s{40+j}, {j*4096}')
    A.e('s_mov_b32 s40, 0')
    A.e('s_waitcnt lgkmcnt(0)')
    srd(A, 12, 8, XBYTES, a_off)
    srd(A, 16, 8, 16 * 129024, WS_WQKV)
    srd(A, 20, 8, XBYTES, WS_O)
    A.e('s_mul_i32 s33, s28, 129024')
    A.e('s_lshl_b32 s34, s29, 10')
    A.e('s_add_u32 s33, s33, s34')
    def aload(ks):
        A.e(f'buffer_load_dwordx4 v[{VA+4*ks}:{VA+4*ks+3}], v2, s[12:15], s{40+ks//4} offen offset:{(ks%4)*1024}')
    def wdma(r):
        A.e(f's_add_u32 m0, s34, {r*9216}')
        A.e(f's_add_u32 s35, s33, {r*9216}')
        A.e('buffer_load_dwordx4 v4, s[16:19], s35 offen lds')
    for i in range(72):
        A.e(f'v_mov_b32 v{VA+i}, 0x3f803f80')
    A.e('v_cmp_ne_u32 s[46:47], 0, v12')
    A.e('s_cmp_eq_u32 s29, 8')
    A.e('s_cselect_b64 s[46:47], s[46:47], -1')
    vm = VM()
    NST, PF = 9, 3
    rdone = [0]
    def issue_stage(st):
        A.e('s_mov_b64 exec, s[46:47]')
        for ks in (2 * st, 2 * st + 1):
            aload(ks); vm.add(st)
        A.e('s_mov_b64 exec, -1')
        rneed = min(14, -(-(14 * (st + 1)) // 9))
        for r in range(rdone[0], rneed):
            wdma(r); vm.add(st)
        rdone[0] = rneed
    VS = 148
    def issue_aux():
        srd(A, 24, 8, 98304, WS_ST)
        A.e('s_lshl_b32 s36, s3, 3')
        A.e('s_add_u32 s36, s36, s30')
        A.e('s_sub_u32 s36, s36, 1')
        A.e('s_lshl_b32 s36, s36, 4')
        A.e('v_add_u32 v3, s36, v12')
        A.e('v_mul_i32_i24 v3, 48, v3')
        for i in range(3):
            A.e(f'buffer_load_dwordx4 v[{VS+4*i}:{VS+4*i+3}], v3, s[24:27], 0 offen offset:{16*i}'); vm.add('aux')
    for st in range(PF): issue_stage(st)
    A.e('v_add_u32 v5, 64512, v4')
    for i in range(28):
        A.e(f'v_mov_b32 v{VACC+i}, 0')
    stamp(A, 1)
    units = [(ks, hf) for ks in range(18) for hf in range(2)]
    def tiles(hf): return range(0, 4) if hf == 0 else range(4, 7)
    def reads(u):
        ks, hf = units[u]
        buf = VB + 16 * (u % 2)
        for i, t in enumerate(tiles(hf)):
            A.e(f'ds_read_b128 v[{buf+4*i}:{buf+4*i+3}], v{4 if ks < 9 else 5} offset:{((ks % 9) * 7 + t) * 1024}')
    def mf(u):
        ks, hf = units[u]
        buf = VB + 16 * (u % 2)
        for i, t in enumerate(tiles(hf)):
            a = VACC + 4 * t
            A.e(f'v_mfma_f32_16x16x32_bf16 v[{a}:{a+3}], v[{buf+4*i}:{buf+4*i+3}], v[{VA+4*ks}:{VA+4*ks+3}], v[{a}:{a+3}]')
    for st in range(NST):
        u0 = 4 * st
        vm.wait_for(A, lambda t: t == st)
        A.e('s_barrier')
        if st < 8: stamp(A, 8 + st)
        reads(u0)
        if st > 0: mf(u0 - 1)
        reads(u0 + 1)
        if st + PF < NST: issue_stage(st + PF)
        if st + PF == NST: issue_aux()
        A.e('s_waitcnt lgkmcnt(3)')
        mf(u0)
        reads(u0 + 2)
        A.e('s_waitcnt lgkmcnt(4)')
        mf(u0 + 1)
        reads(u0 + 3)
        A.e('s_waitcnt lgkmcnt(3)')
        mf(u0 + 2)
        A.e('s_waitcnt lgkmcnt(0)')
    mf(35)
    A.e('s_nop 7')
    stamp(A, 4)
    NOCS = A.newlabel('nocs')
    A.e('s_cmp_lg_u32 s29, 8')
    A.e(f's_cbranch_scc1 {NOCS}')
    A.e('v_lshlrev_b32 v3, 4, v13')
    A.e('v_add_u32 v3, 129024, v3')
    A.e('v_cmp_eq_u32 vcc, 0, v12')
    A.e('s_and_saveexec_b64 s[38:39], vcc')
    for t in range(7):
        A.e(f'ds_write_b128 v3, v[{VACC+4*t}:{VACC+4*t+3}] offset:{64*t}')
    A.e('s_mov_b64 exec, -1')
    A.e('s_waitcnt lgkmcnt(0)')
    A.label(NOCS)
    A.e('s_barrier')
    A.e('v_lshlrev_b32 v3, 4, v13')
    A.e('v_add_u32 v3, 129024, v3')
    for t in range(7):
        A.e(f'ds_read_b128 v[{32+4*t}:{35+4*t}], v3 offset:{64*t}')
    A.e('s_waitcnt vmcnt(0)')
    stats_final(A, VS, 36)
    A.e('s_waitcnt lgkmcnt(0)')
    for i in range(28):
        A.e(f'v_fma_f32 v{VACC+i}, -v{VS}, v{32+i}, v{VACC+i}')
        A.e(f'v_mul_f32 v{VACC+i}, v{VS+1}, v{VACC+i}')
    A.e('s_lshl_b32 s32, s30, 4')
    A.e('v_add_u32 v5, s32, v12')
    A.e(f'v_mul_u32_u24 v5, {RS}, v5')
    A.e('v_lshl_add_u32 v5, v13, 3, v5')
    for t in range(7):
        a = VACC + 4 * t
        A.e(f'v_cvt_pk_bf16_f32 v{a}, v{a}, v{a+1}')
        A.e(f'v_cvt_pk_bf16_f32 v{a+1}, v{a+2}, v{a+3}')
        A.e(f'ds_write_b64 v5, v[{a}:{a+1}] offset:{t*32}')
    A.e('s_waitcnt lgkmcnt(0)')
    A.e('s_barrier')
    A.e('s_cmp_eq_u32 s29, 8')
    A.e(f's_cbranch_scc1 {END}')
    stamp(A, 5)
    Q = 16; K = 32; Vv = 72
    OACC = 112
    LG = 132
    A.e('v_and_b32 v2, 1, v1')
    A.e('v_bfe_u32 v3, v1, 1, 1')
    A.e('v_lshrrev_b32 v4, 2, v1')
    A.e('s_lshl_b32 s32, s29, 4')
    A.e('v_add_u32 v4, s32, v4')
    A.e('v_add_u32 v5, 16, v4')
    A.e(f'v_mul_u32_u24 v5, {RS}, v5')
    A.e('v_mul_u32_u24 v6, 36, v3')
    A.e('v_add_u32 v5, v5, v6')
    A.e(f'v_mul_u32_u24 v6, {8*RS}, v2')
    A.e('v_sub_u32 v6, v5, v6')
    for ww in range(4):
        A.e(f'v_subrev_u32 v{8+ww}, {ww*2*RS}, v6')
    def rd9(dst, base, dwo):
        for i in range(4):
            A.e(f'ds_read2_b32 v[{dst+2*i}:{dst+2*i+1}], v{base} offset0:{dwo+2*i} offset1:{dwo+2*i+1}')
        A.e(f'ds_read_b32 v{dst+8}, v{base} offset:{(dwo+8)*4}')
    rd9(Q, 5, 0)
    for ww in range(4):
        rd9(K + 10 * ww, 8 + ww, 18)
    A.e('s_waitcnt lgkmcnt(0)')
    for ww in range(4):
        rd9(Vv + 10 * ww, 8 + ww, 36)
    for ww in range(4):
        A.e(f'v_mov_b32 v{LG+ww}, 0')
    for i in range(9):
        for ww in range(4):
            A.e(f'v_dot2_f32_bf16 v{LG+ww}, v{Q+i}, v{K+10*ww+i}, v{LG+ww}')
    A.e('s_nop 3')
    A.e(f's_mov_b32 s35, 0x{f32bits(DH ** -0.5):x}')
    A.e('s_lshl_b32 s36, s3, 7')
    A.e('v_add_u32 v7, s36, v4')
    A.e('v_lshlrev_b32 v13, 3, v2')
    A.e(f'v_mov_b32 v14, 0x{f32bits(-1e9):x}')
    for ww in range(4):
        l = LG + ww
        A.e(f'v_cvt_pk_bf16_f32 v{l}, v{l}, v{l}')
        A.e(f'v_lshlrev_b32 v{l}, 16, v{l}')
        A.e(f'v_mul_f32 v{l}, s35, v{l}')
        A.e(f'v_cvt_pk_bf16_f32 v{l}, v{l}, v{l}')
        A.e(f'v_lshlrev_b32 v{l}, 16, v{l}')
        A.e(f'v_add_u32 v12, {2*ww}, v13')
        A.e('v_cmp_ge_u32 vcc, v7, v12')
        A.e('s_nop 1')
        A.e(f'v_cndmask_b32 v{l}, v14, v{l}, vcc')
    A.e(f'v_max3_f32 v12, v{LG}, v{LG+1}, v{LG+2}')
    A.e(f'v_max_f32 v12, v12, v{LG+3}')
    A.e('s_nop 1')
    A.e('v_max_f32_dpp v12, v12, v12 quad_perm:[1,0,3,2] row_mask:0xf bank_mask:0xf')
    A.e(f's_mov_b32 s35, 0x{f32bits(math.log2(math.e)):x}')
    for ww in range(4):
        l = LG + ww
        A.e(f'v_sub_f32 v{l}, v{l}, v12')
        A.e(f'v_mul_f32 v{l}, s35, v{l}')
        A.e(f'v_exp_f32 v{l}, v{l}')
    A.e('s_nop 0')
    A.e(f'v_add_f32 v13, v{LG}, v{LG+1}')
    A.e(f'v_add_f32 v14, v{LG+2}, v{LG+3}')
    A.e('v_add_f32 v13, v13, v14')
    A.e('s_nop 1')
    A.e('v_add_f32_dpp v13, v13, v13 quad_perm:[1,0,3,2] row_mask:0xf bank_mask:0xf')
    A.e('v_rcp_f32 v13, v13')
    A.e('s_nop 0')
    for ww in range(4):
        l = LG + ww
        A.e(f'v_mul_f32 v{l}, v{l}, v13')
        A.e(f'v_cvt_pk_bf16_f32 v{l}, v{l}, v{l}')
        A.e(f'v_lshlrev_b32 v{l}, 16, v{l}')
    A.e('s_mov_b32 s35, 0xffff0000')
    A.e('s_waitcnt lgkmcnt(0)')
    for ww in range(4):
        for i in range(9):
            v = Vv + 10 * ww + i
            A.e(f'v_lshlrev_b32 v12, 16, v{v}')
            A.e(f'v_and_b32 v13, s35, v{v}')
            if ww == 0:
                A.e(f'v_mul_f32 v{OACC+2*i}, v12, v{LG}')
                A.e(f'v_mul_f32 v{OACC+2*i+1}, v13, v{LG}')
            else:
                A.e(f'v_fmac_f32 v{OACC+2*i}, v12, v{LG+ww}')
                A.e(f'v_fmac_f32 v{OACC+2*i+1}, v13, v{LG+ww}')
    A.e('s_nop 1')
    for i in range(18):
        A.e(f'v_add_f32_dpp v{OACC+i}, v{OACC+i}, v{OACC+i} quad_perm:[1,0,3,2] row_mask:0xf bank_mask:0xf')
    for i in range(9):
        A.e(f'v_cvt_pk_bf16_f32 v{Q+i}, v{OACC+2*i}, v{OACC+2*i+1}')
    A.e('v_lshrrev_b32 v12, 4, v7')
    A.e('v_mul_u32_u24 v12, 18432, v12')
    A.e('v_and_b32 v13, 15, v7')
    A.e('v_lshl_add_u32 v12, v13, 4, v12')
    A.e('s_mul_i32 s33, s28, 36')
    A.e('v_mul_u32_u24 v13, 18, v3')
    A.e('v_add_u32 v13, s33, v13')
    A.e('v_cmp_eq_u32 vcc, 0, v2')
    A.e('s_and_saveexec_b64 s[38:39], vcc')
    for i in range(9):
        A.e(f'v_add_u32 v14, {2*i}, v13')
        A.e('v_lshrrev_b32 v15, 3, v14')
        A.e('v_and_b32 v14, 7, v14')
        A.e('v_lshl_add_u32 v14, v14, 1, v12')
        A.e('v_lshl_add_u32 v14, v15, 8, v14')
        A.e(f'buffer_store_dword v{Q+i}, v14, s[20:23], 0 offen')
    A.e('s_mov_b64 exec, -1')
    stamp(A, 6)
    if 'stamp' in EXP: A.e('s_waitcnt vmcnt(0)')
    stamp(A, 7)
    stamp_flush(A, 16, 8)
    A.label(END)
    A.e('s_endpgm')
    A.lines.append(kdesc(name, 160, 100).rstrip())
    return 256, 129536
```

```python
import sys, math, struct, os
from asmlib import *

S = 2048; D = 576; H = 32; DH = 18
XBYTES = S * D * 2
WS_XA, WS_XB, WS_XC, WS_Q, WS_O, WS_KV = 0x0, 0x240000, 0x480000, 0x6C0000, 0x900000, 0xB40000
KA = dict(A_x=0, A_wq=8, A_wk=16, A_wv=24, A_wo=32, B_x=40, B_wqkv=48, B_wo=56, out=64, dbg=72, ws=80)
QSCALE = (DH ** -0.5) * math.log2(math.e)
def f32bits(x): return struct.unpack('<I', struct.pack('<f', x))[0]

def load_ptr(A, sdst, spec):
    if spec[0] == 'k':
        A.e(f's_load_dwordx2 s[{sdst}:{sdst+1}], s[0:1], {KA[spec[1]]}')
        return 0
    A.e(f's_load_dwordx2 s[{sdst}:{sdst+1}], s[0:1], {KA["ws"]}')
    return spec[1]

STAMP_BASE = 54
def stamp(A, i):
    if 'stamp' in os.environ.get('EXP', ''):
        A.e(f's_memtime s[{STAMP_BASE+2*i}:{STAMP_BASE+2*i+1}]')
def stamp_flush(A, n, sws):
    if 'stamp' not in os.environ.get('EXP', ''): return
    A.e('s_waitcnt lgkmcnt(0) vmcnt(0)')
    srd(A, 88, sws, 0x100000, 0xC00000)
    A.e('v_cmp_eq_u32 vcc, 0, v0')
    A.e('s_and_saveexec_b64 s[92:93], vcc')
    A.e('s_lshl_b32 s94, s2, 6')
    A.e('v_mov_b32 v1, s94')
    for i in range(n):
        A.e(f'v_mov_b32 v2, s{STAMP_BASE+2*i}')
        A.e(f'buffer_store_dword v2, v1, s[88:91], 0 offen offset:{4*i}')
    A.e('s_mov_b64 exec, s[92:93]')

def layernorm_regs(A, va, nreg, vt, sone):
    s0, q0 = vt, vt + 4
    A.e(f's_mov_b32 s{sone}, 0x3f803f80')
    for i in range(4):
        A.e(f'v_mov_b32 v{s0+i}, 0')
        A.e(f'v_mov_b32 v{q0+i}, 0')
    for i in range(nreg):
        A.e(f'v_dot2_f32_bf16 v{s0+i%4}, v{va+i}, s{sone}, v{s0+i%4}')
        A.e(f'v_dot2_f32_bf16 v{q0+i%4}, v{va+i}, v{va+i}, v{q0+i%4}')
    A.e('s_nop 3')
    A.e(f'v_add_f32 v{s0}, v{s0}, v{s0+1}')
    A.e(f'v_add_f32 v{s0+2}, v{s0+2}, v{s0+3}')
    A.e(f'v_add_f32 v{q0}, v{q0}, v{q0+1}')
    A.e(f'v_add_f32 v{q0+2}, v{q0+2}, v{q0+3}')
    A.e(f'v_add_f32 v{s0}, v{s0}, v{s0+2}')
    A.e(f'v_add_f32 v{q0}, v{q0}, v{q0+2}')
    for op in ('v_permlane32_swap_b32', 'v_permlane16_swap_b32'):
        A.e(f'v_mov_b32 v{s0+1}, v{s0}')
        A.e(f'v_mov_b32 v{q0+1}, v{q0}')
        A.e('s_nop 1')
        A.e(f'{op} v{s0}, v{s0+1}')
        A.e(f'{op} v{q0}, v{q0+1}')
        A.e(f'v_add_f32 v{s0}, v{s0}, v{s0+1}')
        A.e(f'v_add_f32 v{q0}, v{q0}, v{q0+1}')
    inv = f32bits(1.0 / D)
    A.e(f's_mov_b32 s{sone}, 0x{inv:x}')
    A.e(f'v_mul_f32 v{s0}, s{sone}, v{s0}')
    A.e(f'v_mul_f32 v{q0}, s{sone}, v{q0}')
    A.e(f'v_fma_f32 v{q0}, -v{s0}, v{s0}, v{q0}')
    A.e(f'v_max_f32 v{q0}, 0, v{q0}')
    A.e(f'v_cvt_pk_bf16_f32 v{s0+1}, v{s0}, v{q0}')
    A.e(f'v_lshlrev_b32 v{s0}, 16, v{s0+1}')
    A.e(f'v_and_b32 v{q0}, 0xffff0000, v{s0+1}')
    A.e(f'v_add_f32 v{q0}, 0x{f32bits(1e-5):x}, v{q0}')
    A.e(f'v_cvt_pk_bf16_f32 v{q0}, v{q0}, v{q0}')
    A.e(f'v_lshlrev_b32 v{q0}, 16, v{q0}')
    A.e(f'v_sqrt_f32 v{q0}, v{q0}')
    A.e('s_nop 0')
    A.e(f'v_cvt_pk_bf16_f32 v{q0}, v{q0}, v{q0}')
    A.e(f'v_lshlrev_b32 v{q0}, 16, v{q0}')
    A.e(f'v_rcp_f32 v{q0}, v{q0}')
    A.e('s_nop 0')
    A.e(f'v_mul_f32 v{s0}, v{s0}, v{q0}')
    A.e(f's_mov_b32 s{sone}, 0xffff0000')
    t0 = vt + 8
    for i in range(nreg):
        a = va + i; t = t0 + (i % 2) * 2
        A.e(f'v_lshlrev_b32 v{t}, 16, v{a}')
        A.e(f'v_and_b32 v{t+1}, s{sone}, v{a}')
        A.e(f'v_fma_f32 v{t}, v{t}, v{q0}, -v{s0}')
        A.e(f'v_fma_f32 v{t+1}, v{t+1}, v{q0}, -v{s0}')
        A.e(f'v_cvt_pk_bf16_f32 v{a}, v{t}, v{t+1}')

import os
EXP = os.environ.get('EXP', '')
def gemm96(A, name, mode, a_spec, w_name, xin_spec=None, out_spec=None):
    ncol = 6 if mode == 'out' else 8
    nwg = 32 * ncol
    END = A.newlabel('end')
    A.lines.append(khead(name).rstrip())
    A.e(f's_cmp_ge_u32 s2, {nwg}')
    A.e(f's_cbranch_scc1 {END}')
    stamp(A, 0)
    A.e(f's_load_dwordx2 s[40:41], s[0:1], {KA["ws"]}')
    offA = load_ptr(A, 4, a_spec)
    A.e(f's_load_dwordx2 s[6:7], s[0:1], {KA[w_name]}')
    if mode == 'out':
        offX = load_ptr(A, 8, xin_spec)
        offO = load_ptr(A, 10, out_spec)
        if 'noxcd' in EXP:
            A.e('s_mul_i32 s3, s2, 43691')
            A.e('s_lshr_b32 s3, s3, 18')
            A.e('s_mul_i32 s28, s3, 6')
            A.e('s_sub_u32 s28, s2, s28')
        else:
            A.e('s_lshr_b32 s28, s2, 3')
            A.e('s_mul_i32 s3, s28, 43691')
            A.e('s_lshr_b32 s3, s3, 18')
            A.e('s_mul_i32 s29, s3, 6')
            A.e('s_sub_u32 s28, s28, s29')
            A.e('s_and_b32 s29, s2, 7')
            A.e('s_lshl_b32 s29, s29, 2')
            A.e('s_add_u32 s3, s3, s29')
    else:
        A.e(f's_load_dwordx4 s[8:11], s[0:1], {KA["A_wk"]}')
        A.e(f's_load_dwordx2 s[32:33], s[0:1], {KA["ws"]}')
        if 'noxcd' in EXP:
            A.e('s_lshr_b32 s3, s2, 3')
            A.e('s_and_b32 s28, s2, 7')
        else:
            A.e('s_and_b32 s3, s2, 7')
            A.e('s_lshl_b32 s3, s3, 2')
            A.e('s_lshr_b32 s28, s2, 6')
            A.e('s_add_u32 s3, s3, s28')
            A.e('s_bfe_u32 s28, s2, 0x30003')
    A.e('v_and_b32 v1, 63, v0')
    A.e('v_lshrrev_b32 v11, 6, v0')
    A.e('s_nop 0')
    A.e('v_readfirstlane_b32 s29, v11')
    A.e('v_and_b32 v12, 15, v1')
    A.e('v_lshrrev_b32 v13, 4, v1')
    A.e('s_lshl_b32 s30, s3, 6')
    A.e('s_lshl_b32 s31, s29, 4')
    A.e('s_add_u32 s30, s30, s31')
    A.e('v_add_u32 v14, s30, v12')
    A.e('v_mul_u32_u24 v14, 1152, v14')
    A.e('v_lshl_add_u32 v2, v13, 4, v14')
    A.e('s_waitcnt lgkmcnt(0)')
    srd(A, 12, 4, XBYTES, offA)
    VA, VB, VACC, VX = 16, 88, 136, 160
    for ks in range(18):
        A.e(f'buffer_load_dwordx4 v[{VA+4*ks}:{VA+4*ks+3}], v2, s[12:15], 0 offen offset:{ks*64}')
    nvm_after_A = 0
    if mode == 'out':
        srd(A, 20, 8, XBYTES, offX)
        srd(A, 24, 10, XBYTES, offO)
        A.e('s_mul_i32 s31, s28, 192')
        A.e('v_lshl_add_u32 v3, v13, 3, v14')
        A.e('v_add_u32 v3, s31, v3')
        for t in range(6):
            A.e(f'buffer_load_dwordx2 v[{VX+2*t}:{VX+2*t+1}], v3, s[20:23], 0 offen offset:{t*32}')
    KVPATH = A.newlabel('kv')
    if mode == 'qkv':
        A.e('s_cmp_ge_u32 s28, 6')
        A.e(f's_cbranch_scc1 {KVPATH}')
    srd(A, 16, 6, D * D * 2)
    for r in range(3):
        A.e(f'v_add_u32 v15, {r*256}, v0')
        A.e('v_mul_u32_u24 v11, 43691, v15')
        A.e('v_lshrrev_b32 v11, 19, v11')
        A.e('v_mul_u32_u24 v7, 12, v11')
        A.e('v_sub_u32 v15, v15, v7')
        A.e('v_lshrrev_b32 v7, 3, v11')
        A.e('v_and_b32 v7, 1, v7')
        A.e('v_lshlrev_b32 v7, 1, v7')
        A.e('v_xor_b32 v15, v15, v7')
        A.e('v_lshlrev_b32 v15, 4, v15')
        A.e(f'v_mad_u32_u24 v{4+r}, v11, v9, v15' if False else f'v_mul_u32_u24 v11, 1152, v11')
        A.e(f'v_add_u32 v{4+r}, v11, v15')
    A.e('s_mul_i32 s31, s28, 192')
    A.e('s_lshl_b32 s34, s29, 10')
    for r in range(27):
        A.e(f's_add_u32 m0, s34, {r*4096}')
        A.e(f's_add_u32 s35, s31, {(r//3)*73728}')
        A.e(f'buffer_load_dwordx4 v{4+r%3}, s[16:19], s35 offen lds')
    A.e('v_lshrrev_b32 v7, 2, v12')
    A.e('v_and_b32 v8, 3, v12')
    A.e('v_lshl_add_u32 v7, v13, 3, v7')
    A.e('v_mul_u32_u24 v7, 192, v7')
    A.e('v_lshl_add_u32 v7, v8, 3, v7')
    A.e('v_and_b32 v8, 1, v13')
    A.e('v_lshlrev_b32 v8, 5, v8')
    A.e('v_sub_u32 v9, v7, v8')
    A.e('v_add_u32 v7, v7, v8')
    A.e(f'v_add_u32 v8, {9*6144}, v7')
    A.e(f'v_add_u32 v10, {9*6144}, v9')
    for i in range(24):
        A.e(f'v_mov_b32 v{VACC+i}, 0')
    stamp(A, 1)
    if mode == 'qkv':
        A.e('s_waitcnt vmcnt(27)')
        stamp(A, 7)
        layernorm_regs(A, VA, 72, VX, 36)

    def breads(ks):
        buf = VB + 24 * (ks % 2)
        for t in range(6):
            base = (7 if t % 2 == 0 else 9) + (1 if ks >= 9 else 0)
            off = (ks % 9) * 6144 + t * 32
            A.e(f'ds_read_b64_tr_b16 v[{buf+4*t}:{buf+4*t+1}], v{base} offset:{off}')
            A.e(f'ds_read_b64_tr_b16 v[{buf+4*t+2}:{buf+4*t+3}], v{base} offset:{off+768}')
    A.e('s_waitcnt vmcnt(18)')
    A.e('s_barrier')
    stamp(A, 2)
    breads(0)
    for ks in range(18):
        if ks + 1 < 18:
            if (ks + 1) % 6 == 0:
                A.e(f's_waitcnt vmcnt({18 - 9 * ((ks + 1) // 6)})')
                A.e('s_barrier')
                stamp(A, 2 + (ks + 1) // 6)
            breads(ks + 1)
            A.e('s_waitcnt lgkmcnt(12)')
        else:
            A.e('s_waitcnt lgkmcnt(0)')
        buf = VB + 24 * (ks % 2)
        for t in range(6):
            A.e(f'v_mfma_f32_16x16x32_bf16 v[{VACC+4*t}:{VACC+4*t+3}], v[{buf+4*t}:{buf+4*t+3}], v[{VA+4*ks}:{VA+4*ks+3}], v[{VACC+4*t}:{VACC+4*t+3}]')
    A.e('s_nop 7')
    stamp(A, 5)
    if mode == 'out':
        A.e('s_mov_b32 s36, 0xffff0000')
        for t in range(6):
            a = VACC + 4 * t; x = VX + 2 * t
            A.e(f'v_cvt_pk_bf16_f32 v{a}, v{a}, v{a+1}')
            A.e(f'v_cvt_pk_bf16_f32 v{a+1}, v{a+2}, v{a+3}')
            for h in range(2):
                A.e(f'v_lshlrev_b32 v11, 16, v{a+h}')
                A.e(f'v_and_b32 v15, s36, v{a+h}')
                A.e(f'v_lshlrev_b32 v{a+2}, 16, v{x+h}')
                A.e(f'v_and_b32 v{a+3}, s36, v{x+h}')
                A.e(f'v_add_f32 v11, v11, v{a+2}')
                A.e(f'v_add_f32 v15, v15, v{a+3}')
                A.e(f'v_cvt_pk_bf16_f32 v{x+h}, v11, v15')
            A.e(f'buffer_store_dwordx2 v[{x}:{x+1}], v3, s[24:27], 0 offen offset:{t*32}')
        A.e('s_waitcnt vmcnt(0)')
        stamp(A, 6)
        stamp_flush(A, 8, 40)
        A.e('s_endpgm')
    else:
        srd(A, 24, 32, XBYTES, WS_Q)
        A.e('s_mul_i32 s31, s28, 192')
        A.e('v_lshl_add_u32 v3, v13, 3, v14')
        A.e('v_add_u32 v3, s31, v3')
        A.e(f's_mov_b32 s36, 0x{f32bits(QSCALE):x}')
        for t in range(6):
            a = VACC + 4 * t
            for i in range(4):
                A.e(f'v_mul_f32 v{a+i}, s36, v{a+i}')
            A.e(f'v_cvt_pk_bf16_f32 v{a}, v{a}, v{a+1}')
            A.e(f'v_cvt_pk_bf16_f32 v{a+1}, v{a+2}, v{a+3}')
            A.e(f'buffer_store_dwordx2 v[{a}:{a+1}], v3, s[24:27], 0 offen offset:{t*32}')
        A.e('s_waitcnt vmcnt(0)')
        stamp(A, 6)
        stamp_flush(A, 8, 40)
        A.e('s_endpgm')
        A.label(KVPATH)
        A.e('s_cmp_eq_u32 s28, 6')
        A.e('s_cselect_b32 s16, s8, s10')
        A.e('s_cselect_b32 s17, s9, s11')
        A.e(f's_mov_b32 s18, {D*DH*2}')
        A.e('s_mov_b32 s19, 0x00020000')
        A.e('v_lshrrev_b32 v11, 4, v0')
        A.e('v_and_b32 v15, 15, v0')
        A.e('v_lshrrev_b32 v7, 3, v11')
        A.e('v_and_b32 v7, 1, v7')
        A.e('v_lshlrev_b32 v7, 3, v7')
        A.e('v_xor_b32 v15, v15, v7')
        A.e('v_cmp_gt_u32 vcc, 9, v15')
        A.e('s_nop 1')
        A.e('v_cndmask_b32 v15, 0, v15, vcc')
        A.e('v_lshlrev_b32 v15, 2, v15')
        A.e('v_mul_u32_u24 v11, 36, v11')
        A.e('v_add_u32 v4, v11, v15')
        A.e('s_lshl_b32 s34, s29, 8')
        for r in range(36):
            A.e(f's_add_u32 m0, s34, {r*1024}')
            A.e(f's_mov_b32 s35, {r*16*36}')
            A.e(f'buffer_load_dword v4, s[16:19], s35 offen lds')
        A.e('v_lshrrev_b32 v7, 2, v12')
        A.e('v_and_b32 v8, 3, v12')
        A.e('v_lshl_add_u32 v7, v13, 3, v7')
        A.e('v_lshlrev_b32 v7, 6, v7')
        A.e('v_lshl_add_u32 v7, v8, 3, v7')
        A.e('v_and_b32 v8, 1, v13')
        A.e('v_lshlrev_b32 v8, 5, v8')
        A.e('v_sub_u32 v9, v7, v8')
        A.e('v_add_u32 v7, v7, v8')
        for i in range(8):
            A.e(f'v_mov_b32 v{VACC+i}, 0')
        A.e('s_waitcnt vmcnt(36)')
        layernorm_regs(A, VA, 72, VX, 36)
        A.e('s_waitcnt vmcnt(0)')
        A.e('s_barrier')
        for ks in range(18):
            buf = VB + 8 * (ks % 6)
            for t in range(2):
                base = 7 if t == 0 else 9
                off = ks * 2048 + t * 32
                A.e(f'ds_read_b64_tr_b16 v[{buf+4*t}:{buf+4*t+1}], v{base} offset:{off}')
                A.e(f'ds_read_b64_tr_b16 v[{buf+4*t+2}:{buf+4*t+3}], v{base} offset:{off+256}')
            if ks % 3 == 2:
                A.e('s_waitcnt lgkmcnt(0)')
                for k2 in range(ks - 2, ks + 1):
                    b2 = VB + 8 * (k2 % 6)
                    for t in range(2):
                        A.e(f'v_mfma_f32_16x16x32_bf16 v[{VACC+4*t}:{VACC+4*t+3}], v[{b2+4*t}:{b2+4*t+3}], v[{VA+4*k2}:{VA+4*k2+3}], v[{VACC+4*t}:{VACC+4*t+3}]')
        A.e('s_nop 7')
        srd(A, 24, 32, 163840, WS_KV)
        A.e('v_add_u32 v11, s30, v12')
        A.e('v_lshrrev_b32 v15, 8, v11')
        A.e('v_mul_u32_u24 v15, 20480, v15')
        A.e('v_and_b32 v11, 255, v11')
        VPATH = A.newlabel('vp')
        A.e('s_cmp_eq_u32 s28, 7')
        A.e(f's_cbranch_scc1 {VPATH}')
        a = VACC
        A.e(f'v_cvt_pk_bf16_f32 v{a}, v{a}, v{a+1}')
        A.e(f'v_cvt_pk_bf16_f32 v{a+1}, v{a+2}, v{a+3}')
        A.e('v_lshl_add_u32 v3, v11, 5, v15')
        A.e('v_lshl_add_u32 v3, v13, 3, v3')
        A.e(f'buffer_store_dwordx2 v[{a}:{a+1}], v3, s[24:27], 0 offen')
        A.e(f'v_cvt_pk_bf16_f32 v{a+4}, v{a+4}, v{a+5}')
        A.e(f'v_mov_b32 v{a+5}, 0x3f80')
        A.e('v_lshl_add_u32 v3, v11, 3, v15')
        A.e('v_cmp_eq_u32 vcc, 0, v13')
        A.e('s_and_saveexec_b64 s[38:39], vcc')
        A.e(f'buffer_store_dwordx2 v[{a+4}:{a+5}], v3, s[24:27], 0 offen offset:0')
        A.lines[-1] = f'    buffer_store_dwordx2 v[{a+4}:{a+5}], v3, s[24:27], s37 offen'
        A.lines.insert(len(A.lines) - 2, '    s_mov_b32 s37, 8192')
        A.e('s_endpgm')
        A.label(VPATH)
        A.e('v_lshrrev_b32 v3, 4, v11')
        A.e('v_mul_u32_u24 v3, 640, v3')
        A.e('v_add_u32 v3, v3, v15')
        A.e('v_add_u32 v3, 10240, v3')
        A.e('v_bfe_u32 v7, v11, 2, 1')
        A.e('v_lshl_add_u32 v3, v7, 4, v3')
        A.e('v_and_b32 v7, 3, v11')
        A.e('v_lshl_add_u32 v3, v7, 1, v3')
        A.e('v_bfe_u32 v7, v11, 3, 1')
        A.e('v_lshl_add_u32 v3, v7, 3, v3')
        A.e('v_lshl_add_u32 v8, v13, 7, v3')
        a = VACC
        A.e(f'v_cvt_pk_bf16_f32 v{a}, v{a}, v{a+1}')
        A.e(f'v_cvt_pk_bf16_f32 v{a+1}, v{a+2}, v{a+3}')
        A.e(f'v_cvt_pk_bf16_f32 v{a+4}, v{a+4}, v{a+5}')
        A.e(f'v_mov_b32 v{a+5}, 0x3f80')
        A.e(f'buffer_store_short v{a}, v8, s[24:27], 0 offen offset:0')
        A.e(f'buffer_store_short_d16_hi v{a}, v8, s[24:27], 0 offen offset:32')
        A.e(f'buffer_store_short v{a+1}, v8, s[24:27], 0 offen offset:64')
        A.e(f'buffer_store_short_d16_hi v{a+1}, v8, s[24:27], 0 offen offset:96')
        A.e('v_cmp_eq_u32 vcc, 0, v13')
        A.e('s_and_saveexec_b64 s[38:39], vcc')
        A.e(f'buffer_store_short v{a+4}, v3, s[24:27], 0 offen offset:{16*32}')
        A.e(f'buffer_store_short_d16_hi v{a+4}, v3, s[24:27], 0 offen offset:{17*32}')
        A.e(f'buffer_store_short v{a+5}, v3, s[24:27], 0 offen offset:{18*32}')
        A.e(f'buffer_store_short_d16_hi v{a+5}, v3, s[24:27], 0 offen offset:{19*32}')
        A.e('s_endpgm')
    A.label(END)
    A.e('s_endpgm')
    A.lines.append(kdesc(name, 176, 100).rstrip())
    return nwg, 110592

if __name__ == '__main__':
    pass
```

```python
import sys
from asmlib import *
from gen import *
from gen_attn import attn
from gen_k4 import k4
import gen_v1
HDR = open('interleave_layers__grouped_kv_mqa__sliding_local_dilated__prompt.s.ref').read().split('; Override launch')[0]
def build(path):
    A = Asm()
    L = []
    def add(name, r, blk): L.append((name, r[0], blk, r[1]))
    add('qkva1_kernel', gen_v1.gemm96(A, 'qkva1_kernel', 'qkv', ('k', 'A_x'), 'A_wq'), 256)
    add('attng_kernel', attn(A, 'attng_kernel', True), 512)
    add('outa1_kernel', gemm96(A, 'outa1_kernel', 'out', WS_O, WS_WOA, None, ('w', WS_XA), first=True), 256)
    add('qkvb1_kernel', k4(A, 'qkvb1_kernel', WS_XA), 576)
    add('outb1_kernel', gemm96(A, 'outb1_kernel', 'out', WS_O, WS_WOB, WS_XA, ('w', WS_XB)), 256)
    add('qkva2_kernel', gemm96(A, 'qkva2_kernel', 'qkv', WS_XB, WS_WQ), 256)
    add('attn_kernel', attn(A, 'attn_kernel'), 512)
    add('outa2_kernel', gemm96(A, 'outa2_kernel', 'out', WS_O, WS_WOA, WS_XB, ('w', WS_XC)), 256)
    add('qkvb2_kernel', k4(A, 'qkvb2_kernel', WS_XC), 576)
    add('outb2_kernel', gemm96(A, 'outb2_kernel', 'out', WS_O, WS_WOB, WS_XC, ('k', 'out')), 256)
    out = HDR
    for (n, g, b, l) in L:
        out += f'; @launch kernel={n} grid=({g},1,1) block=({b},1,1) lds={l}\n'
    out += '.amdgcn_target "amdgcn-amd-amdhsa--gfx950"\n.text\n' + A.text()
    open(path, 'w').write(out)
if __name__ == '__main__':
    build(sys.argv[1] if len(sys.argv) > 1 else 'interleave_layers__grouped_kv_mqa__sliding_local_dilated__prompt.s')
```

```python
from asmlib import *
from gen import *

def k4(A, name, a_off):
    END = A.newlabel('end')
    A.lines.append(khead(name).rstrip())
    VA, VB, VACC = 16, 88, 120
    VT = 88
    RS = 232
    A.e('s_cmp_ge_u32 s2, 256')
    A.e(f's_cbranch_scc1 {END}')
    stamp(A, 0)
    A.e(f's_load_dwordx2 s[8:9], s[0:1], {KA["ws"]}')
    A.e('s_bfe_u32 s3, s2, 0x20001')
    A.e('s_lshl_b32 s3, s3, 2')
    A.e('s_lshr_b32 s28, s2, 6')
    A.e('s_add_u32 s3, s3, s28')
    A.e('s_and_b32 s28, s2, 1')
    A.e('s_lshl_b32 s28, s28, 3')
    A.e('s_bfe_u32 s29, s2, 0x30003')
    A.e('s_add_u32 s28, s28, s29')
    A.e('v_and_b32 v1, 63, v0')
    A.e('v_lshrrev_b32 v11, 6, v0')
    A.e('s_nop 0')
    A.e('v_readfirstlane_b32 s29, v11')
    A.e('v_and_b32 v12, 15, v1')
    A.e('v_lshrrev_b32 v13, 4, v1')
    A.e('v_lshlrev_b32 v4, 4, v1')
    A.e('s_add_u32 s30, s29, 1')
    A.e('s_cmp_eq_u32 s29, 8')
    A.e('s_cselect_b32 s30, 0, s30')
    A.e('s_lshl_b32 s31, s3, 3')
    A.e('s_add_u32 s31, s31, s30')
    A.e('s_sub_u32 s31, s31, 1')
    A.e('s_mul_i32 s31, s31, 18432')
    A.e('v_add_u32 v2, s31, v4')
    for j in range(1, 5):
        A.e(f's_mov_b32 s{40+j}, {j*4096}')
    A.e('s_mov_b32 s40, 0')
    A.e('s_waitcnt lgkmcnt(0)')
    srd(A, 12, 8, XBYTES, a_off)
    srd(A, 16, 8, 16 * 129024, WS_WQKV)
    srd(A, 20, 8, XBYTES, WS_O)
    A.e('s_mul_i32 s33, s28, 129024')
    A.e('s_lshl_b32 s34, s29, 10')
    A.e('s_add_u32 s33, s33, s34')
    def aload(ks):
        A.e(f'buffer_load_dwordx4 v[{VA+4*ks}:{VA+4*ks+3}], v2, s[12:15], s{40+ks//4} offen offset:{(ks%4)*1024}')
    def wdma(r):
        A.e(f's_add_u32 m0, s34, {r*9216}')
        A.e(f's_add_u32 s35, s33, {r*9216}')
        A.e('buffer_load_dwordx4 v4, s[16:19], s35 offen lds')
    A.e('v_cmp_ne_u32 s[46:47], 0, v12')
    A.e('s_cmp_eq_u32 s29, 8')
    A.e('s_cselect_b64 s[46:47], s[46:47], -1')
    vm = VM()
    NST, PF = 9, int(os.environ.get('PF', '3'))
    rdone = [0]
    def issue_stage(st):
        A.e('s_mov_b64 exec, s[46:47]')
        for ks in (2 * st, 2 * st + 1):
            aload(ks); vm.add(st)
        A.e('s_mov_b64 exec, -1')
        rneed = min(14, -(-(14 * (st + 1)) // 9))
        for r in range(rdone[0], rneed):
            wdma(r); vm.add(st)
        rdone[0] = rneed
    VS = 148
    def issue_aux():
        srd(A, 24, 8, 98304, WS_ST)
        A.e('s_lshl_b32 s36, s3, 3')
        A.e('s_add_u32 s36, s36, s30')
        A.e('s_sub_u32 s36, s36, 1')
        A.e('s_lshl_b32 s36, s36, 4')
        A.e('v_add_u32 v3, s36, v12')
        A.e('v_mul_i32_i24 v3, 48, v3')
        for i in range(3):
            A.e(f'buffer_load_dwordx4 v[{VS+4*i}:{VS+4*i+3}], v3, s[24:27], 0 offen offset:{16*i}'); vm.add('aux')
    for st in range(PF): issue_stage(st)
    NOONE = A.newlabel('noone')
    A.e('s_cmp_lg_u32 s29, 8')
    A.e(f's_cbranch_scc1 {NOONE}')
    A.e('s_not_b64 exec, s[46:47]')
    for i in range(72):
        A.e(f'v_mov_b32 v{VA+i}, 0x3f803f80')
    A.e('s_mov_b64 exec, -1')
    A.label(NOONE)
    A.e('v_add_u32 v5, 64512, v4')
    for i in range(28):
        A.e(f'v_mov_b32 v{VACC+i}, 0')
    stamp(A, 1)
    units = [(ks, hf) for ks in range(18) for hf in range(2)]
    def tiles(hf): return range(0, 4) if hf == 0 else range(4, 7)
    def reads(u):
        ks, hf = units[u]
        buf = VB + 16 * (u % 2)
        for i, t in enumerate(tiles(hf)):
            A.e(f'ds_read_b128 v[{buf+4*i}:{buf+4*i+3}], v{4 if ks < 9 else 5} offset:{((ks % 9) * 7 + t) * 1024}')
    def mf(u):
        ks, hf = units[u]
        buf = VB + 16 * (u % 2)
        for i, t in enumerate(tiles(hf)):
            a = VACC + 4 * t
            A.e(f'v_mfma_f32_16x16x32_bf16 v[{a}:{a+3}], v[{buf+4*i}:{buf+4*i+3}], v[{VA+4*ks}:{VA+4*ks+3}], v[{a}:{a+3}]')
    for st in range(NST):
        u0 = 4 * st
        vm.wait_for(A, lambda t: t == st)
        A.e('s_barrier')
        if st < 8: stamp(A, 8 + st)
        reads(u0)
        if st > 0: mf(u0 - 1)
        reads(u0 + 1)
        if st + PF < NST: issue_stage(st + PF)
        if st + PF == NST: issue_aux()
        A.e('s_waitcnt lgkmcnt(3)')
        mf(u0)
        reads(u0 + 2)
        A.e('s_waitcnt lgkmcnt(4)')
        mf(u0 + 1)
        reads(u0 + 3)
        A.e('s_waitcnt lgkmcnt(3)')
        mf(u0 + 2)
        A.e('s_waitcnt lgkmcnt(0)')
    mf(35)
    A.e('s_nop 7')
    stamp(A, 4)
    NOCS = A.newlabel('nocs')
    A.e('s_cmp_lg_u32 s29, 8')
    A.e(f's_cbranch_scc1 {NOCS}')
    A.e('v_lshlrev_b32 v3, 4, v13')
    A.e('v_add_u32 v3, 129024, v3')
    A.e('v_cmp_eq_u32 vcc, 0, v12')
    A.e('s_and_saveexec_b64 s[38:39], vcc')
    for t in range(7):
        A.e(f'ds_write_b128 v3, v[{VACC+4*t}:{VACC+4*t+3}] offset:{64*t}')
    A.e('s_mov_b64 exec, -1')
    A.e('s_waitcnt lgkmcnt(0)')
    A.label(NOCS)
    A.e('s_barrier')
    A.e('v_lshlrev_b32 v3, 4, v13')
    A.e('v_add_u32 v3, 129024, v3')
    for t in range(7):
        A.e(f'ds_read_b128 v[{32+4*t}:{35+4*t}], v3 offset:{64*t}')
    A.e('s_waitcnt vmcnt(0)')
    stats_final(A, VS, 36)
    A.e('s_waitcnt lgkmcnt(0)')
    for i in range(28):
        A.e(f'v_fma_f32 v{VACC+i}, -v{VS}, v{32+i}, v{VACC+i}')
        A.e(f'v_mul_f32 v{VACC+i}, v{VS+1}, v{VACC+i}')
    A.e('s_lshl_b32 s32, s30, 4')
    A.e('v_add_u32 v5, s32, v12')
    A.e(f'v_mul_u32_u24 v5, {RS}, v5')
    A.e('v_lshl_add_u32 v5, v13, 3, v5')
    for t in range(7):
        a = VACC + 4 * t
        A.e(f'v_cvt_pk_bf16_f32 v{a}, v{a}, v{a+1}')
        A.e(f'v_cvt_pk_bf16_f32 v{a+1}, v{a+2}, v{a+3}')
        A.e(f'ds_write_b64 v5, v[{a}:{a+1}] offset:{t*32}')
    A.e('s_waitcnt lgkmcnt(0)')
    A.e('s_barrier')
    A.e('s_cmp_eq_u32 s29, 8')
    A.e(f's_cbranch_scc1 {END}')
    stamp(A, 5)
    Q = 16; K = 32; Vv = 72
    OACC = 112
    LG = 132
    A.e('v_and_b32 v2, 1, v1')
    A.e('v_bfe_u32 v3, v1, 1, 1')
    A.e('v_lshrrev_b32 v4, 2, v1')
    A.e('s_lshl_b32 s32, s29, 4')
    A.e('v_add_u32 v4, s32, v4')
    A.e('v_add_u32 v5, 16, v4')
    A.e(f'v_mul_u32_u24 v5, {RS}, v5')
    A.e('v_mul_u32_u24 v6, 36, v3')
    A.e('v_add_u32 v5, v5, v6')
    A.e(f'v_mul_u32_u24 v6, {8*RS}, v2')
    A.e('v_sub_u32 v6, v5, v6')
    for ww in range(4):
        A.e(f'v_subrev_u32 v{8+ww}, {ww*2*RS}, v6')
    def rd9(dst, base, dwo):
        for i in range(4):
            A.e(f'ds_read2_b32 v[{dst+2*i}:{dst+2*i+1}], v{base} offset0:{dwo+2*i} offset1:{dwo+2*i+1}')
        A.e(f'ds_read_b32 v{dst+8}, v{base} offset:{(dwo+8)*4}')
    rd9(Q, 5, 0)
    for ww in range(4):
        rd9(K + 10 * ww, 8 + ww, 18)
    A.e('s_waitcnt lgkmcnt(0)')
    for ww in range(4):
        rd9(Vv + 10 * ww, 8 + ww, 36)
    for ww in range(4):
        A.e(f'v_mov_b32 v{LG+ww}, 0')
    for i in range(9):
        for ww in range(4):
            A.e(f'v_dot2_f32_bf16 v{LG+ww}, v{Q+i}, v{K+10*ww+i}, v{LG+ww}')
    A.e('s_nop 3')
    A.e(f's_mov_b32 s35, 0x{f32bits(DH ** -0.5):x}')
    A.e('s_lshl_b32 s36, s3, 7')
    A.e('v_add_u32 v7, s36, v4')
    A.e('v_lshlrev_b32 v13, 3, v2')
    A.e(f'v_mov_b32 v14, 0x{f32bits(-1e9):x}')
    for ww in range(4):
        l = LG + ww
        A.e(f'v_cvt_pk_bf16_f32 v{l}, v{l}, v{l}')
        A.e(f'v_lshlrev_b32 v{l}, 16, v{l}')
        A.e(f'v_mul_f32 v{l}, s35, v{l}')
        A.e(f'v_cvt_pk_bf16_f32 v{l}, v{l}, v{l}')
        A.e(f'v_lshlrev_b32 v{l}, 16, v{l}')
        A.e(f'v_add_u32 v12, {2*ww}, v13')
        A.e('v_cmp_ge_u32 vcc, v7, v12')
        A.e('s_nop 1')
        A.e(f'v_cndmask_b32 v{l}, v14, v{l}, vcc')
    A.e(f'v_max3_f32 v12, v{LG}, v{LG+1}, v{LG+2}')
    A.e(f'v_max_f32 v12, v12, v{LG+3}')
    A.e('s_nop 1')
    A.e('v_max_f32_dpp v12, v12, v12 quad_perm:[1,0,3,2] row_mask:0xf bank_mask:0xf')
    A.e(f's_mov_b32 s35, 0x{f32bits(math.log2(math.e)):x}')
    for ww in range(4):
        l = LG + ww
        A.e(f'v_sub_f32 v{l}, v{l}, v12')
        A.e(f'v_mul_f32 v{l}, s35, v{l}')
        A.e(f'v_exp_f32 v{l}, v{l}')
    A.e('s_nop 0')
    A.e(f'v_add_f32 v13, v{LG}, v{LG+1}')
    A.e(f'v_add_f32 v14, v{LG+2}, v{LG+3}')
    A.e('v_add_f32 v13, v13, v14')
    A.e('s_nop 1')
    A.e('v_add_f32_dpp v13, v13, v13 quad_perm:[1,0,3,2] row_mask:0xf bank_mask:0xf')
    A.e('v_rcp_f32 v13, v13')
    A.e('s_nop 0')
    for ww in range(4):
        l = LG + ww
        A.e(f'v_mul_f32 v{l}, v{l}, v13')
        A.e(f'v_cvt_pk_bf16_f32 v{l}, v{l}, v{l}')
        A.e(f'v_lshlrev_b32 v{l}, 16, v{l}')
    A.e('s_mov_b32 s35, 0xffff0000')
    A.e('s_waitcnt lgkmcnt(0)')
    for ww in range(4):
        for i in range(9):
            v = Vv + 10 * ww + i
            A.e(f'v_lshlrev_b32 v12, 16, v{v}')
            A.e(f'v_and_b32 v13, s35, v{v}')
            if ww == 0:
                A.e(f'v_mul_f32 v{OACC+2*i}, v12, v{LG}')
                A.e(f'v_mul_f32 v{OACC+2*i+1}, v13, v{LG}')
            else:
                A.e(f'v_fmac_f32 v{OACC+2*i}, v12, v{LG+ww}')
                A.e(f'v_fmac_f32 v{OACC+2*i+1}, v13, v{LG+ww}')
    A.e('s_nop 1')
    for i in range(18):
        A.e(f'v_add_f32_dpp v{OACC+i}, v{OACC+i}, v{OACC+i} quad_perm:[1,0,3,2] row_mask:0xf bank_mask:0xf')
    for i in range(9):
        A.e(f'v_cvt_pk_bf16_f32 v{Q+i}, v{OACC+2*i}, v{OACC+2*i+1}')
    A.e('v_lshrrev_b32 v12, 4, v7')
    A.e('v_mul_u32_u24 v12, 18432, v12')
    A.e('v_and_b32 v13, 15, v7')
    A.e('v_lshl_add_u32 v12, v13, 4, v12')
    A.e('s_mul_i32 s33, s28, 36')
    A.e('v_mul_u32_u24 v13, 18, v3')
    A.e('v_add_u32 v13, s33, v13')
    A.e('v_cmp_eq_u32 vcc, 0, v2')
    A.e('s_and_saveexec_b64 s[38:39], vcc')
    for i in range(9):
        A.e(f'v_add_u32 v14, {2*i}, v13')
        A.e('v_lshrrev_b32 v15, 3, v14')
        A.e('v_and_b32 v14, 7, v14')
        A.e('v_lshl_add_u32 v14, v14, 1, v12')
        A.e('v_lshl_add_u32 v14, v15, 8, v14')
        A.e(f'buffer_store_dword v{Q+i}, v14, s[20:23], 0 offen')
    A.e('s_mov_b64 exec, -1')
    stamp(A, 6)
    if 'stamp' in EXP: A.e('s_waitcnt vmcnt(0)')
    stamp(A, 7)
    stamp_flush(A, 16, 8)
    A.label(END)
    A.e('s_endpgm')
    A.lines.append(kdesc(name, 160, 100).rstrip())
    return 256, 129536
```

```python
import sys, math, struct, os
from asmlib import *

S = 2048; D = 576; H = 32; DH = 18
XBYTES = S * D * 2
WS_XA, WS_XB, WS_XC, WS_Q, WS_O, WS_KV = 0x0, 0x240000, 0x480000, 0x6C0000, 0x900000, 0xB40000
KA = dict(A_x=0, A_wq=8, A_wk=16, A_wv=24, A_wo=32, B_x=40, B_wqkv=48, B_wo=56, out=64, dbg=72, ws=80)
QSCALE = (DH ** -0.5) * math.log2(math.e)
def f32bits(x): return struct.unpack('<I', struct.pack('<f', x))[0]

def load_ptr(A, sdst, spec):
    if spec[0] == 'k':
        A.e(f's_load_dwordx2 s[{sdst}:{sdst+1}], s[0:1], {KA[spec[1]]}')
        return 0
    A.e(f's_load_dwordx2 s[{sdst}:{sdst+1}], s[0:1], {KA["ws"]}')
    return spec[1]

STAMP_BASE = 54
def stamp(A, i):
    if 'stamp' in os.environ.get('EXP', ''):
        A.e(f's_memtime s[{STAMP_BASE+2*i}:{STAMP_BASE+2*i+1}]')
def stamp_flush(A, n, sws):
    if 'stamp' not in os.environ.get('EXP', ''): return
    A.e('s_waitcnt lgkmcnt(0) vmcnt(0)')
    srd(A, 88, sws, 0x100000, 0xC00000)
    A.e('v_cmp_eq_u32 vcc, 0, v0')
    A.e('s_and_saveexec_b64 s[92:93], vcc')
    A.e('s_lshl_b32 s94, s2, 6')
    A.e('v_mov_b32 v1, s94')
    for i in range(n):
        A.e(f'v_mov_b32 v2, s{STAMP_BASE+2*i}')
        A.e(f'buffer_store_dword v2, v1, s[88:91], 0 offen offset:{4*i}')
    A.e('s_mov_b64 exec, s[92:93]')

def layernorm_regs(A, va, nreg, vt, sone, hooks=None):
    s0, q0 = vt, vt + 4
    A.e(f's_mov_b32 s{sone}, 0x3f803f80')
    for i in range(4):
        A.e(f'v_mov_b32 v{s0+i}, 0')
        A.e(f'v_mov_b32 v{q0+i}, 0')
    for i in range(nreg):
        A.e(f'v_dot2_f32_bf16 v{s0+i%4}, v{va+i}, s{sone}, v{s0+i%4}')
        A.e(f'v_dot2_f32_bf16 v{q0+i%4}, v{va+i}, v{va+i}, v{q0+i%4}')
    A.e('s_nop 3')
    A.e(f'v_add_f32 v{s0}, v{s0}, v{s0+1}')
    A.e(f'v_add_f32 v{s0+2}, v{s0+2}, v{s0+3}')
    A.e(f'v_add_f32 v{q0}, v{q0}, v{q0+1}')
    A.e(f'v_add_f32 v{q0+2}, v{q0+2}, v{q0+3}')
    A.e(f'v_add_f32 v{s0}, v{s0}, v{s0+2}')
    A.e(f'v_add_f32 v{q0}, v{q0}, v{q0+2}')
    for op in ('v_permlane32_swap_b32', 'v_permlane16_swap_b32'):
        A.e(f'v_mov_b32 v{s0+1}, v{s0}')
        A.e(f'v_mov_b32 v{q0+1}, v{q0}')
        A.e('s_nop 1')
        A.e(f'{op} v{s0}, v{s0+1}')
        A.e(f'{op} v{q0}, v{q0+1}')
        A.e(f'v_add_f32 v{s0}, v{s0}, v{s0+1}')
        A.e(f'v_add_f32 v{q0}, v{q0}, v{q0+1}')
    inv = f32bits(1.0 / D)
    A.e(f's_mov_b32 s{sone}, 0x{inv:x}')
    A.e(f'v_mul_f32 v{s0}, s{sone}, v{s0}')
    A.e(f'v_mul_f32 v{q0}, s{sone}, v{q0}')
    A.e(f'v_fma_f32 v{q0}, -v{s0}, v{s0}, v{q0}')
    A.e(f'v_max_f32 v{q0}, 0, v{q0}')
    A.e(f'v_cvt_pk_bf16_f32 v{s0+1}, v{s0}, v{q0}')
    A.e(f'v_lshlrev_b32 v{s0}, 16, v{s0+1}')
    A.e(f'v_and_b32 v{q0}, 0xffff0000, v{s0+1}')
    A.e(f'v_add_f32 v{q0}, 0x{f32bits(1e-5):x}, v{q0}')
    A.e(f'v_cvt_pk_bf16_f32 v{q0}, v{q0}, v{q0}')
    A.e(f'v_lshlrev_b32 v{q0}, 16, v{q0}')
    A.e(f'v_sqrt_f32 v{q0}, v{q0}')
    A.e('s_nop 0')
    A.e(f'v_cvt_pk_bf16_f32 v{q0}, v{q0}, v{q0}')
    A.e(f'v_lshlrev_b32 v{q0}, 16, v{q0}')
    A.e(f'v_rcp_f32 v{q0}, v{q0}')
    A.e('s_nop 0')
    A.e(f'v_mul_f32 v{s0}, v{s0}, v{q0}')
    A.e(f's_mov_b32 s{sone}, 0xffff0000')
    t0 = vt + 8
    for i in range(nreg):
        if hooks and i in hooks: hooks[i]()
        a = va + i; t = t0 + (i % 2) * 2
        A.e(f'v_lshlrev_b32 v{t}, 16, v{a}')
        A.e(f'v_and_b32 v{t+1}, s{sone}, v{a}')
        A.e(f'v_fma_f32 v{t}, v{t}, v{q0}, -v{s0}')
        A.e(f'v_fma_f32 v{t+1}, v{t+1}, v{q0}, -v{s0}')
        A.e(f'v_cvt_pk_bf16_f32 v{a}, v{t}, v{t+1}')

import os
EXP = os.environ.get('EXP', '')
def gemm96(A, name, mode, a_spec, w_name, xin_spec=None, out_spec=None):
    ncol = 6 if mode == 'out' else 8
    nwg = 32 * ncol
    END = A.newlabel('end')
    A.lines.append(khead(name).rstrip())
    A.e(f's_cmp_ge_u32 s2, {nwg}')
    A.e(f's_cbranch_scc1 {END}')
    stamp(A, 0)
    A.e(f's_load_dwordx2 s[40:41], s[0:1], {KA["ws"]}')
    offA = load_ptr(A, 4, a_spec)
    A.e(f's_load_dwordx2 s[6:7], s[0:1], {KA[w_name]}')
    if mode == 'out':
        offX = load_ptr(A, 8, xin_spec)
        offO = load_ptr(A, 10, out_spec)
        if 'noxcd' in EXP:
            A.e('s_mul_i32 s3, s2, 43691')
            A.e('s_lshr_b32 s3, s3, 18')
            A.e('s_mul_i32 s28, s3, 6')
            A.e('s_sub_u32 s28, s2, s28')
        else:
            A.e('s_lshr_b32 s28, s2, 3')
            A.e('s_mul_i32 s3, s28, 43691')
            A.e('s_lshr_b32 s3, s3, 18')
            A.e('s_mul_i32 s29, s3, 6')
            A.e('s_sub_u32 s28, s28, s29')
            A.e('s_and_b32 s29, s2, 7')
            A.e('s_lshl_b32 s29, s29, 2')
            A.e('s_add_u32 s3, s3, s29')
    else:
        A.e(f's_load_dwordx4 s[8:11], s[0:1], {KA["A_wk"]}')
        A.e(f's_load_dwordx2 s[32:33], s[0:1], {KA["ws"]}')
        if 'noxcd' in EXP:
            A.e('s_lshr_b32 s3, s2, 3')
            A.e('s_and_b32 s28, s2, 7')
        else:
            A.e('s_and_b32 s3, s2, 7')
            A.e('s_lshl_b32 s3, s3, 2')
            A.e('s_lshr_b32 s28, s2, 6')
            A.e('s_add_u32 s3, s3, s28')
            A.e('s_bfe_u32 s28, s2, 0x30003')
    A.e('v_and_b32 v1, 63, v0')
    A.e('v_lshrrev_b32 v11, 6, v0')
    A.e('s_nop 0')
    A.e('v_readfirstlane_b32 s29, v11')
    A.e('v_and_b32 v12, 15, v1')
    A.e('v_lshrrev_b32 v13, 4, v1')
    A.e('s_lshl_b32 s30, s3, 6')
    A.e('s_lshl_b32 s31, s29, 4')
    A.e('s_add_u32 s30, s30, s31')
    A.e('v_add_u32 v14, s30, v12')
    A.e('v_mul_u32_u24 v14, 1152, v14')
    A.e('v_lshl_add_u32 v2, v13, 4, v14')
    A.e('s_waitcnt lgkmcnt(0)')
    srd(A, 12, 4, XBYTES, offA)
    VA, VB, VACC, VX = 16, 88, 136, 160
    for ks in range(18):
        A.e(f'buffer_load_dwordx4 v[{VA+4*ks}:{VA+4*ks+3}], v2, s[12:15], 0 offen offset:{ks*64}')
    nvm_after_A = 0
    if mode == 'out':
        srd(A, 20, 8, XBYTES, offX)
        srd(A, 24, 10, XBYTES, offO)
        A.e('s_mul_i32 s31, s28, 192')
        A.e('v_lshl_add_u32 v3, v13, 3, v14')
        A.e('v_add_u32 v3, s31, v3')
        for t in range(6):
            A.e(f'buffer_load_dwordx2 v[{VX+2*t}:{VX+2*t+1}], v3, s[20:23], 0 offen offset:{t*32}')
    KVPATH = A.newlabel('kv')
    if mode == 'qkv':
        A.e('s_cmp_ge_u32 s28, 6')
        A.e(f's_cbranch_scc1 {KVPATH}')
    srd(A, 16, 6, D * D * 2)
    for r in range(3):
        A.e(f'v_add_u32 v15, {r*256}, v0')
        A.e('v_mul_u32_u24 v11, 43691, v15')
        A.e('v_lshrrev_b32 v11, 19, v11')
        A.e('v_mul_u32_u24 v7, 12, v11')
        A.e('v_sub_u32 v15, v15, v7')
        A.e('v_lshrrev_b32 v7, 3, v11')
        A.e('v_and_b32 v7, 1, v7')
        A.e('v_lshlrev_b32 v7, 1, v7')
        A.e('v_xor_b32 v15, v15, v7')
        A.e('v_lshlrev_b32 v15, 4, v15')
        A.e(f'v_mad_u32_u24 v{4+r}, v11, v9, v15' if False else f'v_mul_u32_u24 v11, 1152, v11')
        A.e(f'v_add_u32 v{4+r}, v11, v15')
    A.e('s_mul_i32 s31, s28, 192')
    A.e('s_lshl_b32 s34, s29, 10')
    def wd(r):
        A.e(f's_add_u32 m0, s34, {r*4096}')
        A.e(f's_add_u32 s35, s31, {(r//3)*73728}')
        A.e(f'buffer_load_dwordx4 v{4+r%3}, s[16:19], s35 offen lds')
    for r in range(27 if mode == 'out' else 9): wd(r)
    A.e('v_lshrrev_b32 v7, 2, v12')
    A.e('v_and_b32 v8, 3, v12')
    A.e('v_lshl_add_u32 v7, v13, 3, v7')
    A.e('v_mul_u32_u24 v7, 192, v7')
    A.e('v_lshl_add_u32 v7, v8, 3, v7')
    A.e('v_and_b32 v8, 1, v13')
    A.e('v_lshlrev_b32 v8, 5, v8')
    A.e('v_sub_u32 v9, v7, v8')
    A.e('v_add_u32 v7, v7, v8')
    A.e(f'v_add_u32 v8, {9*6144}, v7')
    A.e(f'v_add_u32 v10, {9*6144}, v9')
    for i in range(24):
        A.e(f'v_mov_b32 v{VACC+i}, 0')
    stamp(A, 1)
    if mode == 'qkv':
        A.e('s_waitcnt vmcnt(9)')
        stamp(A, 7)
        hooks = {}
        for q in range(18):
            hooks[q * 4] = (lambda rr: (lambda: wd(rr)))(9 + q)
        layernorm_regs(A, VA, 72, VX, 36, hooks)

    def breads(ks):
        buf = VB + 24 * (ks % 2)
        for t in range(6):
            base = (7 if t % 2 == 0 else 9) + (1 if ks >= 9 else 0)
            off = (ks % 9) * 6144 + t * 32
            A.e(f'ds_read_b64_tr_b16 v[{buf+4*t}:{buf+4*t+1}], v{base} offset:{off}')
            A.e(f'ds_read_b64_tr_b16 v[{buf+4*t+2}:{buf+4*t+3}], v{base} offset:{off+768}')
    A.e('s_waitcnt vmcnt(18)')
    A.e('s_barrier')
    stamp(A, 2)
    breads(0)
    for ks in range(18):
        if ks + 1 < 18:
            if (ks + 1) % 6 == 0:
                A.e(f's_waitcnt vmcnt({18 - 9 * ((ks + 1) // 6)})')
                A.e('s_barrier')
                stamp(A, 2 + (ks + 1) // 6)
            breads(ks + 1)
            A.e('s_waitcnt lgkmcnt(12)')
        else:
            A.e('s_waitcnt lgkmcnt(0)')
        buf = VB + 24 * (ks % 2)
        for t in range(6):
            A.e(f'v_mfma_f32_16x16x32_bf16 v[{VACC+4*t}:{VACC+4*t+3}], v[{buf+4*t}:{buf+4*t+3}], v[{VA+4*ks}:{VA+4*ks+3}], v[{VACC+4*t}:{VACC+4*t+3}]')
    A.e('s_nop 7')
    stamp(A, 5)
    if mode == 'out':
        A.e('s_mov_b32 s36, 0xffff0000')
        for t in range(6):
            a = VACC + 4 * t; x = VX + 2 * t
            A.e(f'v_cvt_pk_bf16_f32 v{a}, v{a}, v{a+1}')
            A.e(f'v_cvt_pk_bf16_f32 v{a+1}, v{a+2}, v{a+3}')
            for h in range(2):
                A.e(f'v_lshlrev_b32 v11, 16, v{a+h}')
                A.e(f'v_and_b32 v15, s36, v{a+h}')
                A.e(f'v_lshlrev_b32 v{a+2}, 16, v{x+h}')
                A.e(f'v_and_b32 v{a+3}, s36, v{x+h}')
                A.e(f'v_add_f32 v11, v11, v{a+2}')
                A.e(f'v_add_f32 v15, v15, v{a+3}')
                A.e(f'v_cvt_pk_bf16_f32 v{x+h}, v11, v15')
            A.e(f'buffer_store_dwordx2 v[{x}:{x+1}], v3, s[24:27], 0 offen offset:{t*32}')
        A.e('s_waitcnt vmcnt(0)')
        stamp(A, 6)
        stamp_flush(A, 8, 40)
        A.e('s_endpgm')
    else:
        srd(A, 24, 32, XBYTES, WS_Q)
        A.e('s_mul_i32 s31, s28, 192')
        A.e('v_lshl_add_u32 v3, v13, 3, v14')
        A.e('v_add_u32 v3, s31, v3')
        A.e(f's_mov_b32 s36, 0x{f32bits(QSCALE):x}')
        for t in range(6):
            a = VACC + 4 * t
            for i in range(4):
                A.e(f'v_mul_f32 v{a+i}, s36, v{a+i}')
            A.e(f'v_cvt_pk_bf16_f32 v{a}, v{a}, v{a+1}')
            A.e(f'v_cvt_pk_bf16_f32 v{a+1}, v{a+2}, v{a+3}')
            A.e(f'buffer_store_dwordx2 v[{a}:{a+1}], v3, s[24:27], 0 offen offset:{t*32}')
        A.e('s_waitcnt vmcnt(0)')
        stamp(A, 6)
        stamp_flush(A, 8, 40)
        A.e('s_endpgm')
        A.label(KVPATH)
        A.e('s_cmp_eq_u32 s28, 6')
        A.e('s_cselect_b32 s16, s8, s10')
        A.e('s_cselect_b32 s17, s9, s11')
        A.e(f's_mov_b32 s18, {D*DH*2}')
        A.e('s_mov_b32 s19, 0x00020000')
        A.e('v_lshrrev_b32 v11, 4, v0')
        A.e('v_and_b32 v15, 15, v0')
        A.e('v_lshrrev_b32 v7, 3, v11')
        A.e('v_and_b32 v7, 1, v7')
        A.e('v_lshlrev_b32 v7, 3, v7')
        A.e('v_xor_b32 v15, v15, v7')
        A.e('v_cmp_gt_u32 vcc, 9, v15')
        A.e('s_nop 1')
        A.e('v_cndmask_b32 v15, 0, v15, vcc')
        A.e('v_lshlrev_b32 v15, 2, v15')
        A.e('v_mul_u32_u24 v11, 36, v11')
        A.e('v_add_u32 v4, v11, v15')
        A.e('s_lshl_b32 s34, s29, 8')
        for r in range(36):
            A.e(f's_add_u32 m0, s34, {r*1024}')
            A.e(f's_mov_b32 s35, {r*16*36}')
            A.e(f'buffer_load_dword v4, s[16:19], s35 offen lds')
        A.e('v_lshrrev_b32 v7, 2, v12')
        A.e('v_and_b32 v8, 3, v12')
        A.e('v_lshl_add_u32 v7, v13, 3, v7')
        A.e('v_lshlrev_b32 v7, 6, v7')
        A.e('v_lshl_add_u32 v7, v8, 3, v7')
        A.e('v_and_b32 v8, 1, v13')
        A.e('v_lshlrev_b32 v8, 5, v8')
        A.e('v_sub_u32 v9, v7, v8')
        A.e('v_add_u32 v7, v7, v8')
        for i in range(8):
            A.e(f'v_mov_b32 v{VACC+i}, 0')
        A.e('s_waitcnt vmcnt(36)')
        layernorm_regs(A, VA, 72, VX, 36)
        A.e('s_waitcnt vmcnt(0)')
        A.e('s_barrier')
        for ks in range(18):
            buf = VB + 8 * (ks % 6)
            for t in range(2):
                base = 7 if t == 0 else 9
                off = ks * 2048 + t * 32
                A.e(f'ds_read_b64_tr_b16 v[{buf+4*t}:{buf+4*t+1}], v{base} offset:{off}')
                A.e(f'ds_read_b64_tr_b16 v[{buf+4*t+2}:{buf+4*t+3}], v{base} offset:{off+256}')
            if ks % 3 == 2:
                A.e('s_waitcnt lgkmcnt(0)')
                for k2 in range(ks - 2, ks + 1):
                    b2 = VB + 8 * (k2 % 6)
                    for t in range(2):
                        A.e(f'v_mfma_f32_16x16x32_bf16 v[{VACC+4*t}:{VACC+4*t+3}], v[{b2+4*t}:{b2+4*t+3}], v[{VA+4*k2}:{VA+4*k2+3}], v[{VACC+4*t}:{VACC+4*t+3}]')
        A.e('s_nop 7')
        srd(A, 24, 32, 163840, WS_KV)
        A.e('v_add_u32 v11, s30, v12')
        A.e('v_lshrrev_b32 v15, 8, v11')
        A.e('v_mul_u32_u24 v15, 20480, v15')
        A.e('v_and_b32 v11, 255, v11')
        VPATH = A.newlabel('vp')
        A.e('s_cmp_eq_u32 s28, 7')
        A.e(f's_cbranch_scc1 {VPATH}')
        a = VACC
        A.e(f'v_cvt_pk_bf16_f32 v{a}, v{a}, v{a+1}')
        A.e(f'v_cvt_pk_bf16_f32 v{a+1}, v{a+2}, v{a+3}')
        A.e('v_lshl_add_u32 v3, v11, 5, v15')
        A.e('v_lshl_add_u32 v3, v13, 3, v3')
        A.e(f'buffer_store_dwordx2 v[{a}:{a+1}], v3, s[24:27], 0 offen')
        A.e(f'v_cvt_pk_bf16_f32 v{a+4}, v{a+4}, v{a+5}')
        A.e(f'v_mov_b32 v{a+5}, 0x3f80')
        A.e('v_lshl_add_u32 v3, v11, 3, v15')
        A.e('v_cmp_eq_u32 vcc, 0, v13')
        A.e('s_and_saveexec_b64 s[38:39], vcc')
        A.e(f'buffer_store_dwordx2 v[{a+4}:{a+5}], v3, s[24:27], 0 offen offset:0')
        A.lines[-1] = f'    buffer_store_dwordx2 v[{a+4}:{a+5}], v3, s[24:27], s37 offen'
        A.lines.insert(len(A.lines) - 2, '    s_mov_b32 s37, 8192')
        A.e('s_endpgm')
        A.label(VPATH)
        A.e('v_lshrrev_b32 v3, 4, v11')
        A.e('v_mul_u32_u24 v3, 640, v3')
        A.e('v_add_u32 v3, v3, v15')
        A.e('v_add_u32 v3, 10240, v3')
        A.e('v_bfe_u32 v7, v11, 2, 1')
        A.e('v_lshl_add_u32 v3, v7, 4, v3')
        A.e('v_and_b32 v7, 3, v11')
        A.e('v_lshl_add_u32 v3, v7, 1, v3')
        A.e('v_bfe_u32 v7, v11, 3, 1')
        A.e('v_lshl_add_u32 v3, v7, 3, v3')
        A.e('v_lshl_add_u32 v8, v13, 7, v3')
        a = VACC
        A.e(f'v_cvt_pk_bf16_f32 v{a}, v{a}, v{a+1}')
        A.e(f'v_cvt_pk_bf16_f32 v{a+1}, v{a+2}, v{a+3}')
        A.e(f'v_cvt_pk_bf16_f32 v{a+4}, v{a+4}, v{a+5}')
        A.e(f'v_mov_b32 v{a+5}, 0x3f80')
        A.e(f'buffer_store_short v{a}, v8, s[24:27], 0 offen offset:0')
        A.e(f'buffer_store_short_d16_hi v{a}, v8, s[24:27], 0 offen offset:32')
        A.e(f'buffer_store_short v{a+1}, v8, s[24:27], 0 offen offset:64')
        A.e(f'buffer_store_short_d16_hi v{a+1}, v8, s[24:27], 0 offen offset:96')
        A.e('v_cmp_eq_u32 vcc, 0, v13')
        A.e('s_and_saveexec_b64 s[38:39], vcc')
        A.e(f'buffer_store_short v{a+4}, v3, s[24:27], 0 offen offset:{16*32}')
        A.e(f'buffer_store_short_d16_hi v{a+4}, v3, s[24:27], 0 offen offset:{17*32}')
        A.e(f'buffer_store_short v{a+5}, v3, s[24:27], 0 offen offset:{18*32}')
        A.e(f'buffer_store_short_d16_hi v{a+5}, v3, s[24:27], 0 offen offset:{19*32}')
        A.e('s_endpgm')
    A.label(END)
    A.e('s_endpgm')
    A.lines.append(kdesc(name, 176, 100).rstrip())
    return nwg, 110592

if __name__ == '__main__':
    pass
```
